```python
import torch

def _softmax(x, axis=-1):
    return torch.softmax(x, dim=axis)
def _gelu(x):
    return torch.nn.functional.gelu(x, approximate="tanh")
def _silu(x):
    return torch.nn.functional.silu(x)
def _sigmoid(x):
    return torch.sigmoid(x)
def _layernorm(x, axis=-1, eps=1e-5):
    m = x.mean(dim=axis, keepdim=True)
    v = x.var(dim=axis, keepdim=True, unbiased=False)
    return (x - m) / torch.sqrt(v + eps)
def _scatter_add(tgt, idx, src, axis=0):
    return tgt.clone().index_add_(axis, idx, src)
def _segment_sum(src, seg, n):
    out = torch.zeros((n,) + src.shape[1:], dtype=src.dtype)
    return out.index_add_(0, seg, src)
def _pad(x, pw):
    flat = tuple(v for pair in reversed(pw) for v in pair)
    return torch.nn.functional.pad(x, flat)

kernel_name = 'standalone__mha_block_cached__near_ridge'

def setup_inputs():

    _w = (lambda a: (lambda t: t.to(torch.bfloat16) if t.is_floating_point() else t)(torch.as_tensor(a)))
    B, Sq, D = 8, 224, 576
    H, Sk, Dh = 32, 512, 128
    return {
        "x": _w((lambda *s: torch.randn(*s, dtype=torch.bfloat16) * 0.8)(B, Sq, D)),
        "k_cache": _w((lambda *s: torch.randn(*s, dtype=torch.bfloat16) * 0.8)(B, H, Sk, Dh)),
        "v_cache": _w((lambda *s: torch.randn(*s, dtype=torch.bfloat16) * 0.05)(B, H, Sk, Dh)),
        "wq": _w((lambda *s: torch.randn(*s, dtype=torch.bfloat16) * 0.8)(D, H * Dh) * (D ** -0.5)),
        "wo": _w((lambda *s: torch.randn(*s, dtype=torch.bfloat16) * 0.05)(H * Dh, D) * ((H * Dh) ** -0.5)),
    }

def reference(x, k_cache, v_cache, wq, wo):
    B, Sq, D = x.shape
    H, Dh = 32, 128
    q = (lambda x, *d: x.permute(*d))((x @ wq).reshape(B, Sq, H, Dh), 0, 2, 1, 3)
    scores = torch.einsum("bhqd,bhkd->bhqk", q, k_cache) * (Dh ** -0.5)
    p = _softmax(scores, axis=-1)
    o = torch.einsum("bhqk,bhkd->bhqd", p, v_cache)
    return (lambda x, *d: x.permute(*d))(o, 0, 2, 1, 3).reshape(B, Sq, H * Dh) @ wo
```

```python
import copy

def V(n, c=1):
    return ('v', n, c)

def A(n, c=1):
    return ('a', n, c)

def rtxt(r):
    k, n, c = r
    return f'{k}{n}' if c == 1 else f'{k}[{n}:{n+c-1}]'

def rset(*rs):
    s = set()
    for r in rs:
        if r is None or isinstance(r, (str, int, float)):
            continue
        k, n, c = r
        base = 0 if k == 'v' else 256
        s.update(range(base + n, base + n + c))
    return s


class I:
    __slots__ = ('text', 'kind', 'rd', 'wr', 'tag', 'csrc')

    def __init__(self, text, kind, rd=(), wr=(), tag=None, csrc=()):
        self.text = text
        self.kind = kind
        self.rd = set(rd)
        self.wr = set(wr)
        self.tag = tag
        self.csrc = set(csrc)


def mfma(d, a, b, c):
    ct = '0' if c == 0 else rtxt(c)
    return I(f'v_mfma_f32_16x16x32_bf16 {rtxt(d)}, {rtxt(a)}, {rtxt(b)}, {ct}', 'mfma',
             rset(a, b, None if c == 0 else c), rset(d), csrc=rset(None if c == 0 else c))

def valu(op, d, *srcs, kind='valu', extra=''):
    st = ', '.join(rtxt(s) if isinstance(s, tuple) else str(s) for s in srcs)
    return I(f'{op} {rtxt(d)}, {st}{extra}', kind, rset(*srcs), rset(d))

def vexp(d, s):
    return valu('v_exp_f32', d, s, kind='trans')

def ds_read(op, d, addr, off):
    assert 0 <= off < 65536, off
    return I(f'{op} {rtxt(d)}, {rtxt(addr)} offset:{off}', 'ldsr', rset(addr), rset(d))

def ds_write(op, addr, s, off):
    assert 0 <= off < 65536, off
    return I(f'{op} {rtxt(addr)}, {rtxt(s)} offset:{off}', 'ldsw', rset(addr, s), ())

def bload(op, d, voff, srd, soff, off=0, flags='', tag=None):
    assert 0 <= off < 4096, off
    o = f' offset:{off}' if off else ''
    return I(f'{op} {rtxt(d)}, {rtxt(voff)}, s[{srd}:{srd+3}], {soff} offen{o}{flags}', 'vld',
             rset(voff), rset(d), tag=tag)

def bdma(voff, srd, soff, flags='', tag=None):
    return I(f'buffer_load_dwordx4 {rtxt(voff)}, s[{srd}:{srd+3}], {soff} offen{flags} lds', 'dma',
             rset(voff), (), tag=tag)

def bstore(op, s, voff, srd, soff, off=0, flags='', tag=None):
    assert 0 <= off < 4096, off
    o = f' offset:{off}' if off else ''
    return I(f'{op} {rtxt(s)}, {rtxt(voff)}, s[{srd}:{srd+3}], {soff} offen{o}{flags}', 'vst',
             rset(voff, s), (), tag=tag)

def salu(text):
    return I(text, 'salu')


class Stream:
    def __init__(self):
        self.out = []
        self.n = 0
        self.lg = []
        self.vm = []
        self.lastw = {}
        self.lastc = {}
        self.laststore = {}
        self.m0w = -10
        self.nops = 0
        self.maxvm = 0

    def state(self):
        return (self.n, list(self.lg), list(self.vm), dict(self.lastw), dict(self.lastc),
                dict(self.laststore), self.m0w)

    def comment(self, t):
        self.out.append(f'; {t}')

    def label(self, name):
        self.out.append(f'{name}:')

    def raw(self, text, n=1):
        self.out.append('\t' + text)
        self.n += n

    def _need(self, pend, regs):
        k = -1
        for i, op in enumerate(pend):
            if op.wr & regs:
                k = i
        return k

    def wait(self, vm=None, lg=None):
        parts = []
        if vm is not None and len(self.vm) > vm:
            assert vm <= 63
            parts.append(f'vmcnt({vm})')
            self.vm = self.vm[len(self.vm) - vm:] if vm else []
        if lg is not None and len(self.lg) > lg:
            lg = min(lg, 15)
            parts.append(f'lgkmcnt({lg})')
            self.lg = self.lg[len(self.lg) - lg:] if lg else []
        if parts:
            self.out.append('\ts_waitcnt ' + ' '.join(parts))
            self.n += 1
            return True
        return False

    def force_wait(self, vm=None, lg=None):
        parts = []
        if vm is not None:
            parts.append(f'vmcnt({vm})')
            if len(self.vm) > vm:
                self.vm = self.vm[len(self.vm) - vm:] if vm else []
        if lg is not None:
            parts.append(f'lgkmcnt({lg})')
            if len(self.lg) > lg:
                self.lg = self.lg[len(self.lg) - lg:] if lg else []
        self.out.append('\ts_waitcnt ' + ' '.join(parts))
        self.n += 1

    def prewait(self, *ins):
        regs = set()
        for i in ins:
            regs |= i.rd | i.wr
        kl = self._need(self.lg, regs)
        kv = self._need(self.vm, regs)
        return self.wait(vm=(len(self.vm) - 1 - kv) if kv >= 0 else None,
                         lg=(len(self.lg) - 1 - kl) if kl >= 0 else None)

    def wait_tag(self, pred, lg=None):
        k = -1
        for i, op in enumerate(self.vm):
            if op.tag is not None and pred(op.tag):
                k = i
        n = (len(self.vm) - 1 - k) if k >= 0 else None
        if n is not None and n > 63:
            n = 63
        return self.wait(vm=n, lg=lg)

    def nop(self, k):
        while k > 0:
            c = min(k, 16)
            self.out.append(f'\ts_nop {c-1}')
            self.n += c
            self.nops += c
            k -= c

    def emit(self, ins):
        if isinstance(ins, (list, tuple)):
            for i in ins:
                self.emit(i)
            return
        k = ins.kind
        self.prewait(ins)
        need = 0
        def dist(n0):
            return self.n - n0 - 1
        isv = k in ('valu', 'trans', 'perm')
        for r in ins.rd:
            lw = self.lastw.get(r)
            if lw is None:
                continue
            wk, wn = lw
            req = 0
            if wk == 'mfma':
                if k == 'mfma':
                    if r in ins.csrc and not (r in (ins.rd - ins.csrc)):
                        req = 0
                    else:
                        req = 8
                else:
                    req = 8
            elif wk in ('valu', 'trans', 'perm'):
                if k == 'mfma':
                    req = 2
                elif k == 'perm':
                    req = 2
                elif wk == 'trans' and isv and k != 'trans':
                    req = 1
                elif wk == 'trans':
                    req = 1
            need = max(need, req - dist(wn))
        for r in ins.wr:
            lw = self.lastw.get(r)
            if lw is not None and lw[0] == 'mfma' and k != 'mfma':
                need = max(need, 8 - dist(lw[1]))
            if lw is not None and lw[0] == 'mfma' and k == 'mfma' and r not in ins.csrc:
                pass
            if isv and r in self.lastc:
                need = max(need, 3 - dist(self.lastc[r]))
            if r in self.laststore:
                need = max(need, 2 - dist(self.laststore[r]))
        if k == 'dma':
            need = max(need, 1 - dist(self.m0w))
        if need > 0:
            self.nop(need)
        self.out.append('\t' + ins.text)
        me = self.n
        self.n += 1
        if k == 'salu' and ins.text.split()[1].startswith('m0'):
            self.m0w = me
        for r in ins.wr:
            self.lastw[r] = (k, me)
        for r in ins.csrc:
            self.lastc[r] = me
        if k == 'vst':
            for r in ins.rd:
                self.laststore[r] = me
        if k in ('ldsr', 'ldsw'):
            self.lg.append(ins)
        if k in ('vld', 'dma', 'vst'):
            self.vm.append(ins)
            self.maxvm = max(self.maxvm, len(self.vm))

    def text(self):
        return '\n'.join(self.out) + '\n'


COST = {'valu': 1, 'perm': 1, 'trans': 2, 'ldsr': 1, 'ldsw': 1, 'vld': 1, 'dma': 1, 'vst': 1}


class Op:
    def __init__(self, ins, lo, hi, deps=(), it=0, name=''):
        self.ins = ins if isinstance(ins, list) else [ins]
        self.lo, self.hi = lo, hi
        self.deps = list(deps)
        self.gap = None
        self.name = name
        self.cost = sum(COST.get(i.kind, 0) for i in self.ins)
        self.ismem = any(i.kind in ('ldsr', 'ldsw', 'vld', 'dma', 'vst') for i in self.ins)


def schedule(ops, ngaps, modulo=True, cap=2, extra_every=None, verbose=False):
    total = sum(o.cost for o in ops)
    over = max(0, total - cap * ngaps)
    capv = [cap] * ngaps
    if over:
        step = ngaps / over
        for k in range(over):
            capv[int(k * step + step / 2) % ngaps] += 1
    used = [0] * ngaps
    mem = [0] * ngaps
    pend = sorted(ops, key=lambda o: (o.hi, o.lo))
    lo_all = min(o.lo for o in ops)
    hi_all = max(o.hi for o in ops)
    g = lo_all
    forced = 0
    while pend:
        assert g <= hi_all + 64, 'schedule overflow'
        gm = g % ngaps if modulo else g
        progress = True
        while progress:
            progress = False
            for o in pend:
                if o.lo > g:
                    continue
                ok = all(d.gap is not None and d.gap + dd <= g for d, dd in o.deps)
                if not ok:
                    continue
                must = o.hi <= g
                fits = used[gm] + o.cost <= capv[gm] and not (o.ismem and mem[gm] >= 1 and not must)
                if fits or must:
                    if must and not fits:
                        forced += 1
                    o.gap = g
                    used[gm] += o.cost
                    mem[gm] += o.ismem
                    pend.remove(o)
                    progress = True
                    break
        g += 1
    est = sum(max(16, 8 + 4 * u) for u in used)
    if verbose:
        print(f'schedule: {len(ops)} ops, cost {total}, gaps {ngaps}, forced {forced}, est cycles {est}')
    return est
```

```python
import sys, math, struct
sys.path.insert(0, 'gen')
from asmlib import *

B, SQ, D, H, SK, DH = 8, 224, 576, 32, 512, 128
X_BYTES = B * SQ * D * 2
W_BYTES = D * H * DH * 2
OUT_BYTES = B * SQ * D * 2
O_BYTES = B * SQ * H * DH * 2
SLOT = 16384
SCALE = (DH ** -0.5) * math.log2(math.e)

def f32hex(x):
    return '0x%08x' % struct.unpack('<I', struct.pack('<f', x))[0]

vLANE = V(1)
vXoff = V(2)
vWdma = V(3)
vKdma = V(4)
vVdma = V(5)
vKdma2 = V(6)
vVdma2 = V(7)
vW0l = V(8)
vW1l = V(9)
vKl = V(10)
vVl = V(11)
vKa = V(12)
vVa = V(13)
vW0a = V(14)
vW1a = V(15)
vL16 = V(16)
vT0, vT1, vT2, vT3 = V(17), V(18), V(19), V(20)
vRI = [V(21), V(22), V(23), V(0)]
def Lr(j): return V(24 + j)
def Pb(b, k=None): return V(28 + 4 * b, 4) if k is None else V(28 + 4 * b + k)
def Sb(b, kt=None, r=None):
    if r is not None: return V(40 + 8 * b + 4 * kt + r)
    return V(40 + 8 * b + 4 * kt, 4)
def Qr(j, ds, k=None): return V(64 + 16 * j + 4 * ds, 4) if k is None else V(64 + 16 * j + 4 * ds + k)
def Or(j, dt, k=None): return V(128 + 32 * j + 4 * dt, 4) if k is None else V(128 + 32 * j + 4 * dt + k)
def Kf(kt, ds): return A(16 * kt + 4 * ds, 4)
def Vf(dt, a=None): return A(32 + 4 * dt, 4) if a is None else A(32 + 4 * dt + 2 * a, 2)
def Wf(i, v=None): return A(4 * i, 4) if v is None else A(4 * i + 2 * v, 2)
XRING = 14
def Xf(ks, j): return A(32 + 16 * (ks % XRING) + 4 * j, 4)

sX, sWQ, sK, sV, sO = 4, 8, 12, 16, 20
sXQ = [24, 25, 26, 27]
sWAVE, sP, sPP = 28, 29, 30
sWoff = 31
sWm0 = 32
sKVm0 = 33
sT, sT2 = 34, 35
sKVs = 36
sDS = 37
sRS = 38
sRA, sRB = 39, 40
sCNT = 41
sB, sH = 42, 43
sOQ = [44, 45, 46, 47]
sC = 48
sLO, sHI = 50, 51

WSLOT = [7, 8, 9, 4, 5, 6, 7, 8, 9]


def emit_gaps(st, mf, ops, salu_ops, fixed, ngaps, keep=lambda o: True, keep_m=lambda k: True,
              g0=0, g1=None, mod=None):
    if g1 is None:
        g1 = len(mf)
    bygap = {}
    for o in ops:
        g = o.gap % mod if mod else o.gap
        bygap.setdefault(g, []).append(o)
    sq = sorted(salu_ops, key=lambda t: (t[0], t[1]))
    sq = [s for s in sq if s[1] >= g0 - 1 and s[0] < g1]
    for g in range(g0, g1):
        if keep_m(g):
            st.emit(mf[g])
        shadow = False
        if g in fixed:
            fixed[g](st)
            shadow = True
        here = [o for o in bygap.get(g, []) if keep(o)]
        nxt = [mf[k] for k in range(g + 1, min(g + 2, g1)) if keep_m(k)]
        if nxt and st.prewait(*nxt):
            shadow = True
        while sq and (sq[0][1] <= g or (not shadow and sq[0][0] <= g)):
            st.emit(sq.pop(0)[2])
            shadow = True
        here.sort(key=lambda o: (0 if o.ismem else 1, o.seq))
        for o in here:
            st.emit(o.ins)
    for s in sq:
        st.emit(s[2])


class Seq:
    n = 0
def mkop(ins, lo, hi, deps=(), off=0, name=''):
    o = Op(ins, lo, hi, deps, name=name)
    o.seq = Seq.n
    Seq.n += 1
    return o


def kv_dma_tile(t):
    slot = t % 10
    L = []
    for which, srd, voff in ((0, sK, vKdma), (1, sV, vVdma)):
        L.append([salu(f's_add_u32 m0, s{sKVm0}, {slot * SLOT + which * 8192}'),
                  salu(f's_mov_b32 s{sT}, {t * 8192}'),
                  I(f'buffer_load_dwordx4 {rtxt(voff)}, s[{srd}:{srd+3}], s{sT} offen lds', 'dma', rset(voff), (), tag=('kv', t))])
        L.append([I(f'buffer_load_dwordx4 {rtxt(voff)}, s[{srd}:{srd+3}], s{sT} offen offset:2048 lds', 'dma', rset(voff), (), tag=('kv', t))])
    return L


def w_dma_stage(s):
    L = []
    for kk in range(2):
        for hw in range(2):
            goff = (64 * s + 32 * kk + 16 * hw) * 8192
            loff = WSLOT[s] * SLOT + 1024 * (8 * kk + hw)
            L.append([salu(f's_add_u32 m0, s{sWm0}, {loff}'),
                      salu(f's_add_u32 s{sT2}, s{sWoff}, {goff}'),
                      bdma(vWdma, sWQ, f's{sT2}', tag=('w', s))])
    return L


def x_loads(ks):
    return [[bload('buffer_load_dwordx4', Xf(ks, j), vXoff, sX, f's{sXQ[j]}', off=64 * ks, tag=('x', ks))]
            for j in range(4)]


def gen_k1(cfg):
    st = Stream()
    E = st.emit
    R = st.raw
    name = cfg['k1name']
    st.out.append(f'.globl {name}\n.p2align 8\n.type {name},@function\n{name}:')
    R('s_cmp_ge_u32 s2, 256')
    R('s_cbranch_scc1 L_k1_end')
    R('s_load_dwordx8 s[52:59], s[0:1], 0')
    R('s_load_dwordx2 s[60:61], s[0:1], 56')
    if cfg.get('stamp'):
        R('s_memrealtime s[70:71]')
    R('s_getpc_b64 s[62:63]')
    R('v_lshlrev_b32 v17, 7, v0')
    if cfg.get('codepf', True):
        E(I('global_load_dword v18, v17, s[62:63]', 'vld', rset(V(17)), rset(V(18))))
    R('v_and_b32 v1, 63, v0')
    R('v_lshrrev_b32 v19, 6, v0')
    R('s_nop 0')
    R(f'v_readfirstlane_b32 s{sWAVE}, v19')
    nbl = cfg['nb_log2']
    R('s_and_b32 s64, s2, 7')
    R('s_lshr_b32 s65, s2, 3')
    nbg_log2 = 3 - nbl
    nh_log2 = 5 - nbl
    R(f's_and_b32 s66, s64, {(1 << nbg_log2) - 1}')
    R(f's_lshr_b32 s67, s64, {nbg_log2}')
    R(f's_lshl_b32 s66, s66, {nbl}')
    R(f's_lshr_b32 s68, s65, {nh_log2}')
    R(f's_add_u32 s{sB}, s66, s68')
    R(f's_lshl_b32 s67, s67, {nh_log2}')
    R(f's_and_b32 s68, s65, {(1 << nh_log2) - 1}')
    R(f's_add_u32 s{sH}, s67, s68')
    R(f's_and_b32 s{sP}, s{sWAVE}, 1')
    R(f's_lshr_b32 s{sPP}, s{sWAVE}, 1')
    R('v_lshrrev_b32 v19, 4, v1')
    R('v_and_b32 v20, 15, v1')
    R('v_lshlrev_b32 v16, 4, v1')
    R('v_mul_u32_u24 v2, 1152, v20')
    R('v_lshl_add_u32 v2, v19, 4, v2')
    R('v_bfe_u32 v21, v1, 1, 2')
    R('v_bfe_u32 v22, v1, 3, 1')
    R('v_lshl_add_u32 v21, v22, 3, v21')
    R('v_lshlrev_b32 v3, 13, v21')
    R('v_lshl_add_u32 v3, v19, 5, v3')
    R('v_and_b32 v22, 1, v1')
    R('v_lshl_add_u32 v3, v22, 4, v3')
    R('v_bfe_u32 v21, v1, 1, 3')
    R('v_lshlrev_b32 v5, 8, v21')
    R('v_lshl_add_u32 v5, v19, 5, v5')
    R('v_lshl_add_u32 v5, v22, 4, v5')
    R('v_and_b32 v21, 7, v1')
    R('v_lshlrev_b32 v4, 8, v21')
    R('v_lshrrev_b32 v21, 5, v1')
    R('v_lshl_add_u32 v4, v21, 6, v4')
    R('v_bfe_u32 v21, v1, 3, 1')
    R('v_lshl_add_u32 v4, v21, 5, v4')
    R('v_bfe_u32 v21, v1, 4, 1')
    R('v_lshl_add_u32 v4, v21, 4, v4')
    R(f's_lshl_b32 s64, s{sP}, 7')
    R(f's_lshl_b32 s65, s{sPP}, 12')
    R('s_add_u32 s64, s64, s65')
    R('v_add_u32 v4, s64, v4')
    R('v_add_u32 v5, s64, v5')
    R('v_add_u32 v6, 0x2000, v4')
    R('v_add_u32 v7, 0x2000, v5')
    R(f's_lshl_b32 s{sKVm0}, s{sP}, 10')
    R(f's_add_u32 s{sKVm0}, s{sKVm0}, s65')
    R(f's_lshl_b32 s{sWoff}, s{sPP}, 15')
    R(f's_lshl_b32 s64, s{sP}, 7')
    R(f's_add_u32 s{sWoff}, s{sWoff}, s64')
    R(f's_lshl_b32 s{sWm0}, s{sWAVE}, 11')
    R('v_lshlrev_b32 v11, 3, v20')
    R('v_and_b32 v21, 1, v19')
    R('v_lshl_add_u32 v11, v21, 7, v11')
    R('v_lshrrev_b32 v21, 1, v19')
    R('v_lshl_add_u32 v8, v21, 10, v11')
    R('v_lshl_add_u32 v11, v21, 11, v11')
    R(f's_lshl_b32 s64, s{sP}, 11')
    R('s_sub_u32 s65, 0x800, s64')
    R('v_add_u32 v9, s65, v8')
    R('v_add_u32 v8, s64, v8')
    R('v_lshrrev_b32 v21, 3, v20')
    R('v_lshlrev_b32 v10, 11, v21')
    R('v_lshl_add_u32 v10, v19, 7, v10')
    R('v_and_b32 v21, 7, v20')
    R('v_lshl_add_u32 v10, v21, 4, v10')
    R(f's_mul_i32 s64, s{sPP}, 7')
    R(f's_lshl_b32 s65, s{sP}, 2')
    R('s_add_u32 s65, s65, s64')
    R('s_add_u32 s64, s64, 3')
    R(f's_mul_i32 s{sXQ[0]}, s65, 18432')
    R(f's_add_u32 s{sXQ[1]}, s{sXQ[0]}, 18432')
    R(f's_add_u32 s{sXQ[2]}, s{sXQ[0]}, 36864')
    R(f's_mul_i32 s{sXQ[3]}, s64, 18432')
    R(f's_mul_i32 s66, s{sB}, 14')
    R('s_add_u32 s65, s65, s66')
    R('s_add_u32 s64, s64, s66')
    R(f's_lshl_b32 s67, s{sH}, 12')
    R('s_lshl_b32 s65, s65, 17')
    R('s_lshl_b32 s64, s64, 17')
    R(f's_add_u32 s{sOQ[0]}, s65, s67')
    R(f's_add_u32 s{sOQ[1]}, s{sOQ[0]}, 0x20000')
    R(f's_add_u32 s{sOQ[2]}, s{sOQ[0]}, 0x40000')
    R(f's_add_u32 s{sOQ[3]}, s64, s67')
    R(f's_lshl_b32 s{sRA}, s{sP}, 14')
    R(f's_sub_u32 s{sRB}, 0x4000, s{sRA}')
    R(f's_mov_b32 s{sC}, {f32hex(SCALE)}')
    R(f's_mov_b32 s{sC+1}, {f32hex(SCALE)}')
    R('s_waitcnt lgkmcnt(0)')
    R(f's_mul_i32 s64, s{sB}, {SQ * D * 2}')
    R(f's_add_u32 s{sX}, s52, s64')
    R(f's_addc_u32 s{sX+1}, s53, 0')
    R(f's_mov_b32 s{sX+2}, {SQ * D * 2}')
    R(f's_mov_b32 s{sX+3}, 0x20000')
    R(f's_lshl_b32 s64, s{sH}, 8')
    R(f's_add_u32 s{sWQ}, s58, s64')
    R(f's_addc_u32 s{sWQ+1}, s59, 0')
    R(f's_sub_u32 s{sWQ+2}, {W_BYTES}, s64')
    R(f's_mov_b32 s{sWQ+3}, 0x20000')
    R(f's_lshl_b32 s64, s{sB}, 5')
    R(f's_add_u32 s64, s64, s{sH}')
    R('s_lshl_b32 s64, s64, 17')
    R(f's_add_u32 s{sK}, s54, s64')
    R(f's_addc_u32 s{sK+1}, s55, 0')
    R(f's_mov_b32 s{sK+2}, 0x20000')
    R(f's_mov_b32 s{sK+3}, 0x20000')
    R(f's_add_u32 s{sV}, s56, s64')
    R(f's_addc_u32 s{sV+1}, s57, 0')
    R(f's_mov_b32 s{sV+2}, 0x20000')
    R(f's_mov_b32 s{sV+3}, 0x20000')
    R(f's_mov_b32 s{sO}, s60')
    R(f's_mov_b32 s{sO+1}, s61')
    R(f's_mov_b32 s{sO+2}, {cfg.get("ws_bytes", 0x10000000)}')
    R(f's_mov_b32 s{sO+3}, 0x20000')

    init = (w_dma_stage(0) + x_loads(0) + x_loads(1) + w_dma_stage(1) + x_loads(2) + x_loads(3) +
            kv_dma_tile(0) + w_dma_stage(2) + x_loads(4) + x_loads(5) + kv_dma_tile(1) +
            w_dma_stage(3) + x_loads(6) + x_loads(7) + w_dma_stage(4))
    for grp in init:
        E(grp)
    for j in range(4):
        E(valu('v_mov_b32', Lr(j), 0))

    def wread(ks, i):
        s, kk = ks // 2, ks % 2
        addr = vW0a if i < 4 else vW1a
        sb = i % 4
        return [ds_read('ds_read_b64_tr_b16', Wf(i, v), addr, 1024 * (8 * kk + 4 * v) + 256 * sb) for v in range(2)]

    def waddr(s):
        return [valu('v_add_u32', vW0a, WSLOT[s] * SLOT, vW0l), valu('v_add_u32', vW1a, WSLOT[s] * SLOT, vW1l)]

    E(waddr(0))
    st.wait_tag(lambda t: t == ('w', 0))
    R('s_barrier')
    for i in range(8):
        E(wread(0, i))

    mf = []
    first, last = {}, {}
    for ks in range(18):
        for i in range(8):
            first[(ks, i)] = len(mf)
            for j in range(4 if i < 4 else 3):
                acc = Or(j, i)
                mf.append(mfma(acc, Wf(i), Xf(ks, j), 0 if ks == 0 else acc))
            last[(ks, i)] = len(mf) - 1
    NG = len(mf)
    ops, fixed, sal = [], {}, []
    LAT = 7
    BQ = 8
    bar_gap = {s: 28 * (2 * s - 1) + BQ for s in range(1, 9)}
    aop = {}
    for s in range(1, 9):
        def fx(st_, s=s):
            st_.wait_tag(lambda t: t == ('w', s), lg=0)
            st_.raw('s_barrier')
        fixed[bar_gap[s]] = fx
        a = waddr(s)
        aop[s] = [mkop(a[0], bar_gap[s] - 4, bar_gap[s] - 1), mkop(a[1], bar_gap[s] - 4, bar_gap[s] - 1)]
        ops += aop[s]
    for ks in range(1, 18):
        for i in range(8):
            lo = last[(ks - 1, i)]
            hi = first[(ks, i)] - LAT
            if ks % 2 == 0:
                lo = max(lo, bar_gap[ks // 2])
            else:
                hi = min(hi, 28 * ks + 1)
            for ins in wread(ks, i):
                ops.append(mkop(ins, lo, hi))
    later = {0: w_dma_stage(5), 1: kv_dma_tile(2), 2: kv_dma_tile(3) + x_loads(8), 3: x_loads(9),
             4: x_loads(10) + x_loads(11), 5: x_loads(12) + x_loads(13), 6: x_loads(14) + x_loads(15),
             7: x_loads(16), 8: x_loads(17)}
    prev = None
    glist = []
    for ks in sorted(later):
        for k, grp in enumerate(later[ks]):
            glist.append((28 * ks + 2 + 3 * k, grp))
    for s in range(1, 9):
        rel = s - 1
        grp = w_dma_stage(rel + 6) if rel < 3 else (kv_dma_tile(rel + 1) if rel + 1 < 8 else [])
        for k, g_ in enumerate(grp):
            glist.append((bar_gap[s] + 1 + 3 * k, g_))
    glist.sort(key=lambda t: t[0])
    ordered = []
    i = 0
    pairs = []
    for g_, grp in glist:
        pairs.append((g_, grp))
    heads = []
    for g_, grp in pairs:
        if grp[0].kind == 'dma' and len(grp) == 1:
            for hgrp in reversed(heads):
                if hgrp[1][0][-1].tag == grp[0].tag and len(hgrp[1]) == 1 and hgrp[1][0][-1].rd == grp[0].rd:
                    hgrp[1].append(grp)
                    break
            else:
                raise AssertionError
        else:
            heads.append([g_, [grp]])
    cur = 0
    for g_, grps in heads:
        for grp in grps:
            g = max(g_, cur)
            o = mkop(grp, g, g + 40, deps=[(prev, 2)] if prev else [])
            ops.append(o)
            prev = o
            cur = g + 2
    schedule(ops, NG + 64, modulo=False, verbose=True)
    emit_gaps(st, mf, ops, sal, fixed, NG)
    print('qproj max vm', st.maxvm, 'nops', st.nops)

    SCR = 8 * SLOT
    def conv(j, dsp, ds):
        X, Y = 2 * dsp, 2 * dsp + 1
        L = []
        for t in (X, Y):
            for k in (0, 2):
                r = V(128 + 32 * j + 4 * t + k, 2)
                L.append(I(f'v_pk_mul_f32 {rtxt(r)}, {rtxt(r)}, s[{sC}:{sC+1}]', 'valu', rset(r), rset(r)))
        L.append(valu('v_cvt_pk_bf16_f32', Qr(j, ds, 0), Or(j, X, 0), Or(j, X, 1)))
        L.append(valu('v_cvt_pk_bf16_f32', Qr(j, ds, 1), Or(j, X, 2), Or(j, X, 3)))
        L.append(valu('v_cvt_pk_bf16_f32', Qr(j, ds, 2), Or(j, Y, 0), Or(j, Y, 1)))
        L.append(valu('v_cvt_pk_bf16_f32', Qr(j, ds, 3), Or(j, Y, 2), Or(j, Y, 3)))
        return L
    def swaps(j, ds):
        return [I(f'v_permlane16_swap_b32 {rtxt(Qr(j, ds, k))}, {rtxt(Qr(j, ds, k + 2))}', 'perm',
                  rset(Qr(j, ds, k), Qr(j, ds, k + 2)), rset(Qr(j, ds, k), Qr(j, ds, k + 2))) for k in range(2)]
    R(f's_lshl_b32 s64, s{sWAVE}, 11')
    R(f's_add_u32 s64, s64, {SCR}')
    R('s_xor_b32 s65, s64, 0x800')
    E(valu('v_add_u32', vT0, 's64', vL16))
    E(valu('v_add_u32', vT1, 's65', vL16))
    R(f's_cmp_eq_u32 s{sP}, 1')
    R('s_cbranch_scc1 L_conv1')
    saved = st.state()
    for p in range(2):
        if p == 1:
            R('s_branch L_conv_done')
            st.label('L_conv1')
            (st.n, st.lg, st.vm, st.lastw, st.lastc, st.laststore, st.m0w) = saved
            st.lg = list(st.lg); st.vm = list(st.vm); st.lastw = dict(st.lastw)
        for dsp in range(2):
            E(conv(3, dsp, dsp ^ (2 * p)))
        E(conv(0, 0, 0 ^ (2 * p)))
        for dsp in range(2):
            E(swaps(3, dsp ^ (2 * p)))
        for dsp in range(2):
            E(ds_write('ds_write_b128', vT0, Qr(3, dsp ^ (2 * p)), 1024 * dsp))
        todo = [(j, dsp) for j in range(3) for dsp in range(4)]
        prevc = todo[0]
        for (j, dsp) in todo[1:]:
            E(conv(j, dsp, dsp ^ (2 * p)))
            E(swaps(prevc[0], prevc[1] ^ (2 * p)))
            prevc = (j, dsp)
        st.wait_tag(lambda t: t in (('kv', 0), ('kv', 1)), lg=0)
        R('s_barrier')
        for dsp in range(2):
            E(ds_read('ds_read_b128', Qr(3, (dsp ^ (2 * p)) ^ 2), vT1, 1024 * dsp))
        E(swaps(prevc[0], prevc[1] ^ (2 * p)))
    st.label('L_conv_done')
    st.lastw = {r: (k, st.n - 1) if k != 'mfma' else (k, n) for r, (k, n) in st.lastw.items()}

    if cfg.get('dumpq'):
        st.wait(lg=0)
        for j in range(4):
            for ds in range(4):
                E(bstore('buffer_store_dwordx4', Qr(j, ds), vL16, sO, f's{sOQ[j]}', off=1024 * ds))
        st.wait(vm=0)
        R('s_branch L_k1_end')

    JQ = [0, 1, 2, 3, 0, 1, 2]
    BUF = [0, 1, 0, 1, 0, 1, 2]
    NB = 112
    def kread(kt, ds):
        return ds_read('ds_read_b128', Kf(kt, ds), vKa, 4096 * kt + 1024 * (ds >> 1) + 512 * (ds & 1))
    def vread(dt, a):
        return ds_read('ds_read_b64_tr_b16', Vf(dt, a), vVa, 8192 + 4096 * a + 1024 * (dt >> 2) + 256 * (dt & 3))

    def build_body(first_iter):
        mf, moff = [], []
        for u in range(7):
            un = (u + 1) % 7
            for kt in range(2):
                for ds in range(4):
                    s_ = Sb(BUF[un], kt)
                    mf.append(mfma(s_, Kf(kt, ds), Qr(JQ[un], ds), 0 if ds == 0 else s_))
                    moff.append(1 if u == 6 else 0)
            up = (u - 1) % 7
            for dt in range(8):
                o_ = Or(JQ[up], dt)
                c0 = first_iter and u >= 1 and up < 4
                mf.append(mfma(o_, Vf(dt), Pb(BUF[up]), 0 if c0 else o_))
                moff.append(-1 if u == 0 else 0)
        return mf, moff

    BG = 86
    Seq.n = 0
    ops = []
    for u in range(7):
        b_ = BUF[u]
        base = 16 * U if False else 16 * u
        nxt = min(k for k in range(u + 1, u + 8) if BUF[k % 7] == b_)
        reuse = 16 * (nxt - 1)
        pv = 16 * (u + 1) + 8
        prv = max(k for k in range(u - 7, u) if BUF[k % 7] == b_)
        pfree = 16 * (prv + 1) + 15
        lastadd = None
        for kt in range(2):
            rdy = base - 16 + 4 * kt + 3 + 3
            dl = min(reuse + 4 * kt - 1, pv - 2)
            ex = []
            for r in range(4):
                e = mkop(vexp(Sb(b_, kt, r), Sb(b_, kt, r)), rdy, dl - 3 + (r // 2), name=f'e{u}{kt}{r}')
                ex.append(e)
                ops.append(e)
            for r in range(4):
                deps = [(ex[r], 1)]
                if lastadd: deps.append((lastadd, 0))
                a_ = mkop(valu('v_add_f32', Lr(JQ[u]), Lr(JQ[u]), Sb(b_, kt, r)), rdy, reuse + 4 * kt - 1, deps)
                ops.append(a_)
                lastadd = a_
            for h_ in range(2):
                c_ = mkop(valu('v_cvt_pk_bf16_f32', Pb(b_, 2 * kt + h_), Sb(b_, kt, 2 * h_), Sb(b_, kt, 2 * h_ + 1)),
                          max(rdy, pfree), dl, [(ex[2 * h_], 1), (ex[2 * h_ + 1], 1)])
                ops.append(c_)
    LATA = 7
    aK2 = mkop(valu('v_add_u32', vKa, f's{sT}', vKl), 20, 31)
    aV2 = mkop(valu('v_add_u32', vVa, f's{sT}', vVl), 40, 71)
    aK1 = mkop(valu('v_add_u32', vKa, f's{sT2}', vKl), BG - 112 - 20, BG - 112 - 1)
    aV1 = mkop(valu('v_add_u32', vVa, f's{sT2}', vVl), BG - 112, 7)
    ops += [aK2, aV2, aK1, aV1]
    for kt in range(2):
        for ds in range(4):
            f = 4 * kt + ds
            ops.append(mkop(kread(kt, ds), max(BG, 80 + f) - 112, 96 + f - 112 - LATA, [(aK1, 1)], name='K1'))
            ops.append(mkop(kread(kt, ds), 32 + f, 48 + f - LATA, [(aK2, 1)], name='K2'))
    for dt in range(8):
        for a in range(2):
            ops.append(mkop(vread(dt, a), 8 + dt, 24 + dt - LATA, [(aV1, 1)], name='V1'))
            ops.append(mkop(vread(dt, a), 72 + dt, min(88 + dt - LATA, BG - 3), [(aV2, 1)], name='V2'))
    dma_ops = []
    dg = [BG + 2 + 12 * k for k in range(8)]
    sal = []
    for k in range(8):
        tile, which, half = k >> 2, (k >> 1) & 1, k & 1
        voff = [[vKdma, vVdma], [vKdma2, vVdma2]][tile][which]
        srd = sK if which == 0 else sV
        o = ' offset:2048' if half else ''
        ins = I(f'buffer_load_dwordx4 {rtxt(voff)}, s[{srd}:{srd+3}], s{sKVs} offen{o} lds', 'dma', rset(voff), (), tag=('kvl', 0))
        op = mkop(ins, dg[k], dg[k] + 4, name='dma')
        ops.append(op)
        dma_ops.append(op)
    est = schedule(ops, NB, modulo=True, verbose=True)
    def sal_list(with_prev, with_next):
        L = []
        def add(lo, hi, text, off):
            L.append((lo, hi, salu(text), off))
        for k in range(0, 8, 2):
            g = dma_ops[k].gap
            lo = (dma_ops[k - 1].gap + 1) if k else BG
            add(lo, g - 1, f's_add_u32 m0, s{sDS}, {8192 * (k // 2)}', 0)
        gl = dma_ops[7].gap
        add(gl + 1, gl + 3, f's_add_u32 s{sKVs}, s{sKVs}, 16384', 0)
        add(gl + 2, gl + 4, f's_add_u32 s{sDS}, s{sDS}, 0x8000', 0)
        add(gl + 3, gl + 5, f's_cmp_ge_u32 s{sDS}, 0x28000', 0)
        add(gl + 4, gl + 6, f's_cselect_b32 s{sLO}, 0x28000, 0', 0)
        add(gl + 5, gl + 7, f's_sub_u32 s{sDS}, s{sDS}, s{sLO}', 0)
        add(8, aK2.gap - 1, f's_add_u32 s{sT}, s{sRS}, s{sRB}', 0)
        g = aK1.gap + 112
        add(g - 12, g - 9, f's_add_u32 s{sRS}, s{sRS}, 0x8000', 0)
        add(g - 11, g - 8, f's_cmp_ge_u32 s{sRS}, 0x28000', 0)
        add(g - 10, g - 7, f's_cselect_b32 s{sHI}, 0x28000, 0', 0)
        add(g - 9, g - 6, f's_sub_u32 s{sRS}, s{sRS}, s{sHI}', 0)
        add(g - 8, g - 2, f's_add_u32 s{sT2}, s{sRS}, s{sRA}', 0)
        out = []
        for lo, hi, ins, off in L:
            lo = max(lo, (hi // NB) * NB)
            w = lo // NB
            assert hi // NB == w, (lo, hi, ins.text)
            if w == 1 and not with_prev:
                continue
            out.append((lo % NB, hi % NB, ins))
        return out
    assert aV1.gap >= aK1.gap and aV1.gap < aK1.gap + 112 - 12
    gl = dma_ops[7].gap % NB
    ga = (aK1.gap + 112 - 12)
    assert gl + 7 < ga or ga + 10 < gl + 1, (gl, ga)

    def barfix(st_):
        st_.force_wait(vm=24, lg=0)
        st_.raw('s_barrier')

    def itoff(o):
        return -(o.gap // NB)
    R(f's_mov_b32 s{sRS}, 0')
    R(f's_mov_b32 s{sT2}, s{sRA}')
    R(f's_mov_b32 s{sKVs}, {10 * 8192}')
    R(f's_mov_b32 s{sDS}, s{sKVm0}')
    mf0, moff = build_body(True)
    mfN, _ = build_body(False)
    pro = sorted([o for o in ops if o.gap < 0], key=lambda o: (o.gap, o.seq))
    E(aK1.ins)
    for o in pro:
        if o.name == 'K1':
            E(o.ins)
    st.wait(lg=8)
    R('s_barrier')
    for t in (8, 9):
        for grp in kv_dma_tile(t):
            E(grp)
    emit_gaps(st, mfN, [o for o in pro if o.name != 'K1' and o is not aK1], [], {}, NB,
              keep_m=lambda k: moff[k] == 1, g0=80, mod=NB)
    emit_gaps(st, mf0, ops, sal_list(False, True), {BG: barfix}, NB, keep=lambda o: itoff(o) != -1,
              keep_m=lambda k: moff[k] != -1, mod=NB)
    R(f's_mov_b32 s{sCNT}, 6')
    st.out.append('.p2align 3')
    st.label('L_attn_loop')
    n0 = len(st.out)
    emit_gaps(st, mfN, ops, sal_list(True, True) + [(100, 108, salu(f's_sub_u32 s{sCNT}, s{sCNT}, 1'))],
              {BG: barfix}, NB, mod=NB)
    R(f's_cmp_lg_u32 s{sCNT}, 0')
    R('s_cbranch_scc1 L_attn_loop')
    bodyA = st.out[n0:]
    st2 = copy.copy(st)
    st2.out = []
    st2.lg = list(st.lg); st2.vm = list(st.vm); st2.lastw = dict(st.lastw); st2.lastc = dict(st.lastc)
    emit_gaps(st2, mfN, ops, sal_list(True, True) + [(100, 108, salu(f's_sub_u32 s{sCNT}, s{sCNT}, 1'))],
              {BG: barfix}, NB, mod=NB)
    assert st2.out == bodyA[:-2], 'loop body not in steady state'
    emit_gaps(st, mfN, ops, sal_list(True, False), {}, NB,
              keep=lambda o: itoff(o) != 1 and not (o.name == 'dma' and o.gap < NB),
              keep_m=lambda k: moff[k] != 1, mod=NB)
    emit_gaps(st, mfN, ops, [], {}, NB, keep=lambda o: itoff(o) == -1 and o.name != 'dma',
              keep_m=lambda k: moff[k] == -1, mod=NB)
    print('attn nops total', st.nops)

    def perm(op, a, b):
        return I(f'{op} {rtxt(a)}, {rtxt(b)}', 'perm', rset(a, b), rset(a, b))
    tmp = [V(40 + j) for j in range(4)]
    for op in ('v_permlane32_swap_b32', 'v_permlane16_swap_b32'):
        for j in range(4):
            E(valu('v_mov_b32', tmp[j], Lr(j)))
        for j in range(4):
            E(perm(op, Lr(j), tmp[j]))
        for j in range(4):
            E(valu('v_add_f32', Lr(j), Lr(j), tmp[j]))
    st.force_wait(vm=0, lg=0)
    R('s_barrier')
    R(f's_lshl_b32 s64, s{sWAVE}, 13')
    R('s_xor_b32 s65, s64, 0x2000')
    E(valu('v_add_u32', vT0, 's64', vL16))
    E(valu('v_add_u32', vT1, 's65', vL16))
    def fin(j, s, ri, dst):
        L = []
        for t in (2 * s, 2 * s + 1):
            for k in (0, 2):
                r = V(128 + 32 * j + 4 * t + k, 2)
                rp = V(ri[1], 2) if ri[1] % 2 == 0 else V(ri[1] - 1, 2)
                sel = 'op_sel:[0,0] op_sel_hi:[1,0]' if ri[1] % 2 == 0 else 'op_sel:[0,1] op_sel_hi:[1,1]'
                L.append(I(f'v_pk_mul_f32 {rtxt(r)}, {rtxt(r)}, {rtxt(rp)} {sel}', 'valu', rset(r, ri), rset(r)))
        X, Y = 2 * s, 2 * s + 1
        L.append(valu('v_cvt_pk_bf16_f32', V(dst), Or(j, X, 0), Or(j, X, 1)))
        L.append(valu('v_cvt_pk_bf16_f32', V(dst + 1), Or(j, X, 2), Or(j, X, 3)))
        L.append(valu('v_cvt_pk_bf16_f32', V(dst + 2), Or(j, Y, 0), Or(j, Y, 1)))
        L.append(valu('v_cvt_pk_bf16_f32', V(dst + 3), Or(j, Y, 2), Or(j, Y, 3)))
        L.append(bstore('buffer_store_dwordx4', V(dst, 4), vL16, sO, f's{sOQ[j]}', off=1024 * s, flags=cfg.get('ostore', '')))
        return L
    R(f's_cmp_eq_u32 s{sP}, 1')
    R('s_cbranch_scc1 L_ep1')
    saved = st.state()
    for p in range(2):
        if p == 1:
            R('s_branch L_ep_done')
            st.label('L_ep1')
            (st.n, st.lg, st.vm, st.lastw, st.lastc, st.laststore, st.m0w) = saved
            st.lg = list(st.lg); st.vm = list(st.vm); st.lastw = dict(st.lastw); st.laststore = dict(st.laststore)
        for k in range(4):
            E(ds_write('ds_write_b128', vT0, Or(3, 4 * (1 - p) + k), 1024 * k))
        E(ds_write('ds_write_b32', vT0, Lr(3), 4096))
        for j in range(3):
            E(valu('v_rcp_f32', vRI[j], Lr(j), kind='trans'))
        st.wait(lg=0)
        R('s_barrier')
        for k in range(4):
            E(ds_read('ds_read_b128', V(44 + 4 * k, 4), vT1, 1024 * k))
        E(ds_read('ds_read_b32', V(60), vT1, 4096))
        n = 0
        for j in range(3):
            for s in range(4):
                E(fin(j, s, vRI[j], 64 + 4 * (n % 12)))
                n += 1
        E(valu('v_add_f32', Lr(3), Lr(3), V(60)))
        E(valu('v_rcp_f32', vRI[3], Lr(3), kind='trans'))
        for k in range(4):
            for h_ in (0, 2):
                r = V(128 + 96 + 4 * (4 * p + k) + h_, 2)
                q = V(44 + 4 * k + h_, 2)
                E(I(f'v_pk_add_f32 {rtxt(r)}, {rtxt(r)}, {rtxt(q)}', 'valu', rset(r, q), rset(r)))
        for s in (2 * p, 2 * p + 1):
            E(fin(3, s, vRI[3], 112 + 4 * (s & 1)))
    st.label('L_ep_done')
    if cfg.get('stamp'):
        st.force_wait(vm=0)
        R('s_memrealtime s[72:73]')
        R('s_waitcnt lgkmcnt(0)')
        R(f's_cmp_lg_u32 s{sWAVE}, 0')
        R('s_cbranch_scc1 L_k1_end')
        R('v_mov_b32 v40, s70\n\tv_mov_b32 v41, s71\n\tv_mov_b32 v42, s72\n\tv_mov_b32 v43, s73')
        R('s_lshl_b32 s64, s2, 10')
        R('s_add_u32 s64, s64, 0x8000000')
        R(f'buffer_store_dwordx4 v[40:43], v16, s[{sO}:{sO+3}], s64 offen')
    st.label('L_k1_end')
    R('s_endpgm')
    return st.text()


def gen_k2(cfg):
    st = Stream()
    E = st.emit
    R = st.raw
    name = cfg['k2name']
    st.out.append(f'.globl {name}\n.p2align 8\n.type {name},@function\n{name}:')
    sOo, sWO, sOUT = 4, 8, 12
    sW, sMT, sNT = 16, 17, 18
    sR = [20, 21, 22, 23]
    sM0b, sG = 24, 25
    R('s_cmp_ge_u32 s2, 256')
    R('s_cbranch_scc1 L_k2_end')
    R('s_load_dwordx4 s[28:31], s[0:1], 32')
    R('s_load_dwordx2 s[32:33], s[0:1], 56')
    if cfg.get('stamp'):
        R('s_memrealtime s[70:71]')
    R('s_getpc_b64 s[34:35]')
    R('v_lshlrev_b32 v8, 7, v0')
    R('v_and_b32 v8, 0x1fff, v8')
    if cfg.get('codepf', True):
        E(I('global_load_dword v9, v8, s[34:35]', 'vld', rset(V(8)), rset(V(9))))
    R('s_and_b32 s36, s2, 7')
    R('s_lshr_b32 s37, s2, 3')
    R('s_and_b32 s38, s36, 1')
    R('s_lshl_b32 s38, s38, 5')
    R('s_add_u32 s38, s38, s37')
    R('s_cmp_ge_u32 s38, 63')
    R('s_cbranch_scc1 L_k2_end')
    R(f's_mul_hi_u32 s{sNT}, s38, 0x24924925')
    R(f's_mul_i32 s39, s{sNT}, 7')
    R('s_sub_u32 s39, s38, s39')
    R('s_lshr_b32 s36, s36, 1')
    R('s_mul_i32 s36, s36, 7')
    R(f's_add_u32 s{sMT}, s36, s39')
    R('v_and_b32 v1, 63, v0')
    R('v_lshrrev_b32 v10, 6, v0')
    R('s_nop 0')
    R(f'v_readfirstlane_b32 s{sW}, v10')
    R('v_lshrrev_b32 v10, 4, v1')
    R('v_and_b32 v11, 15, v1')
    R('v_lshlrev_b32 v2, 4, v1')
    R(f's_lshl_b32 s36, s{sW}, 15')
    R('v_add_u32 v3, s36, v2')
    R('v_bfe_u32 v12, v1, 1, 3')
    R('v_mul_u32_u24 v4, 1152, v12')
    R('v_lshl_add_u32 v4, v10, 5, v4')
    R('v_and_b32 v12, 1, v1')
    R('v_lshl_add_u32 v4, v12, 4, v4')
    R('v_lshlrev_b32 v5, 3, v11')
    R('v_and_b32 v12, 1, v10')
    R('v_lshl_add_u32 v5, v12, 7, v5')
    R('v_lshrrev_b32 v12, 1, v10')
    R('v_lshl_add_u32 v5, v12, 10, v5')
    R(f's_mul_i32 s{sM0b}, s{sW}, 40960')
    R(f'v_add_u32 v5, s{sM0b}, v5')
    for i in range(4):
        R(f's_lshl_b32 s{sR[i]}, s{sMT}, 19')
        if i:
            R(f's_add_u32 s{sR[i]}, s{sR[i]}, {i * 0x20000}')
    R(f's_mul_i32 s{sG}, s{sW}, {1024 * 1152}')
    R(f's_lshl_b32 s36, s{sNT}, 7')
    R(f's_add_u32 s{sG}, s{sG}, s36')
    R('s_waitcnt lgkmcnt(0)')
    R(f's_mov_b32 s{sOo}, s32\n\ts_mov_b32 s{sOo+1}, s33\n\ts_mov_b32 s{sOo+2}, {cfg.get("ws_bytes", 0x10000000)}\n\ts_mov_b32 s{sOo+3}, 0x20000')
    R(f's_mov_b32 s{sWO}, s28\n\ts_mov_b32 s{sWO+1}, s29\n\ts_mov_b32 s{sWO+2}, {W_BYTES}\n\ts_mov_b32 s{sWO+3}, 0x20000')
    R(f's_mov_b32 s{sOUT}, s30\n\ts_mov_b32 s{sOUT+1}, s31\n\ts_mov_b32 s{sOUT+2}, {OUT_BYTES}\n\ts_mov_b32 s{sOUT+3}, 0x20000')
    PD = cfg.get('k2pd', 7)
    ORING = PD + 1
    LR = 10
    def Of(kp, i): return A(16 * (kp % ORING) + 4 * i, 4)
    def Wf2(kp, sb, a=None):
        b0 = 80 + 16 * (kp % 2) + 4 * sb
        return V(b0, 4) if a is None else V(b0 + 2 * a, 2)
    def Acc(sb, i): return V(16 + 16 * i + 4 * sb, 4)
    def loads(kp):
        L = []
        for kb in range(4):
            L.append([salu(f's_add_u32 m0, s{sM0b}, {4096 * (kp % LR) + 1024 * kb}'),
                      salu(f's_add_u32 s36, s{sG}, {(32 * kp + 8 * kb) * 1152}'),
                      bdma(V(4), sWO, 's36', tag=('wo', kp))])
        for i in range(4):
            pre = []
            if i == 0 and kp % 4 == 0 and kp:
                pre = [valu('v_add_u32', V(3), 4096, V(3))]
            L.append(pre + [bload('buffer_load_dwordx4', Of(kp, i), V(3), sOo, f's{sR[i]}', off=1024 * (kp % 4),
                                  flags=cfg.get('oload', ''), tag=('o', kp))])
        return L
    def wreads(kp):
        return [ds_read('ds_read_b64_tr_b16', Wf2(kp, sb, a), V(5), 4096 * (kp % LR) + 2048 * a + 256 * sb)
                for sb in range(4) for a in range(2)]
    for kp in range(PD):
        for grp in loads(kp):
            E(grp)
    st.wait_tag(lambda t: t == ('wo', 0))
    E(wreads(0))
    for kp in range(32):
        fill = []
        if kp + 1 < 32:
            fill += [('w', kp + 1)] + [[x] for x in wreads(kp + 1)]
        ld = loads(kp + PD) if kp + PD < 32 else []
        ms = [mfma(Acc(sb, i), Wf2(kp, sb), Of(kp, i), 0 if kp == 0 else Acc(sb, i)) for sb in range(4) for i in range(4)]
        seq = ld[:4] + fill + ld[4:]
        for g, m in enumerate(ms):
            E(m)
            k = 0
            while seq and k < (2 if len(seq) > 16 - g else 1):
                it = seq.pop(0)
                if isinstance(it, tuple):
                    st.wait_tag(lambda t, kk=it[1]: t == ('wo', kk))
                    continue
                E(it)
                k += 1
        assert not seq
    print('k2 max vm', st.maxvm, 'nops', st.nops)
    st.force_wait(vm=0, lg=0)
    R('s_barrier')
    R(f's_lshl_b32 s36, s{sW}, 14')
    E(valu('v_add_u32', V(6), 's36', V(2)))
    for i in range(4):
        for sb in range(4):
            E(ds_write('ds_write_b128', V(6), Acc(sb, i), 4096 * i + 1024 * sb))
    st.wait(lg=0)
    R('s_barrier')
    R(f's_lshl_b32 s36, s{sW}, 12')
    E(valu('v_add_u32', V(6), 's36', V(2)))
    for ww in range(4):
        for sb in range(4):
            E(ds_read('ds_read_b128', V(16 + 16 * ww + 4 * sb, 4), V(6), 16384 * ww + 1024 * sb))
    R(f's_lshl_b32 s36, s{sMT}, 2')
    R(f's_add_u32 s36, s36, s{sW}')
    R('s_mul_i32 s36, s36, 18432')
    R(f's_lshl_b32 s37, s{sNT}, 7')
    R('s_add_u32 s36, s36, s37')
    R('v_mul_u32_u24 v7, 1152, v11')
    R('v_and_b32 v12, 1, v10')
    R('v_lshl_add_u32 v7, v12, 5, v7')
    R('v_lshrrev_b32 v12, 1, v10')
    R('v_lshl_add_u32 v7, v12, 4, v7')
    for ww in (1, 3):
        for k in range(0, 16, 2):
            r, q = V(16 + 16 * (ww - 1) + k, 2), V(16 + 16 * ww + k, 2)
            E(I(f'v_pk_add_f32 {rtxt(r)}, {rtxt(r)}, {rtxt(q)}', 'valu', rset(r, q), rset(r)))
    for k in range(0, 16, 2):
        r, q = V(16 + k, 2), V(48 + k, 2)
        E(I(f'v_pk_add_f32 {rtxt(r)}, {rtxt(r)}, {rtxt(q)}', 'valu', rset(r, q), rset(r)))
    for k in range(8):
        E(valu('v_cvt_pk_bf16_f32', V(80 + k), V(16 + 2 * k), V(17 + 2 * k)))
    for pr in range(2):
        for k in range(2):
            a, b = V(80 + 4 * pr + k), V(80 + 4 * pr + 2 + k)
            E(I(f'v_permlane16_swap_b32 {rtxt(a)}, {rtxt(b)}', 'perm', rset(a, b), rset(a, b)))
    for pr in range(2):
        E(bstore('buffer_store_dwordx4', V(80 + 4 * pr, 4), V(7), sOUT, 's36', off=64 * pr))
    if cfg.get('stamp'):
        st.force_wait(vm=0)
        R('s_memrealtime s[72:73]')
        R('s_waitcnt lgkmcnt(0)')
        R(f's_cmp_lg_u32 s{sW}, 0')
        R('s_cbranch_scc1 L_k2_end')
        R('v_mov_b32 v40, s70\n\tv_mov_b32 v41, s71\n\tv_mov_b32 v42, s72\n\tv_mov_b32 v43, s73')
        R('s_lshl_b32 s36, s2, 10')
        R('s_add_u32 s36, s36, 0x8100000')
        R(f'buffer_store_dwordx4 v[40:43], v2, s[{sOo}:{sOo+3}], s36 offen')
    st.label('L_k2_end')
    R('s_endpgm')
    return st.text(), 16 * ORING


def kd(name, nv, acc, ns):
    return f'''.p2align 6
.amdhsa_kernel {name}
  .amdhsa_next_free_vgpr {nv}
  .amdhsa_next_free_sgpr {ns}
  .amdhsa_accum_offset {acc}
  .amdhsa_group_segment_fixed_size 0
  .amdhsa_kernarg_size 64
  .amdhsa_user_sgpr_count 2
  .amdhsa_user_sgpr_kernarg_segment_ptr 1
  .amdhsa_system_sgpr_workgroup_id_x 1
.end_amdhsa_kernel
'''

def build(cfg):
    cfg.setdefault('k1name', 'mha_attn_kernel')
    cfg.setdefault('k2name', 'mha_oproj_kernel')
    cfg.setdefault('nb_log2', 2)
    k1 = gen_k1(cfg)
    k2, k2a = gen_k2(cfg)
    hdr = open('standalone__mha_block_cached__near_ridge.s.ref').read().split('\n')
    hdr = [l for l in hdr[:9]]
    out = '\n'.join(hdr) + '\n'
    out += f'; @launch kernel={cfg["k1name"]} grid=(256,1,1) block=(256,1,1) lds=163840\n'
    if not cfg.get('dumpq') and not cfg.get('k1only'):
        out += f'; @launch kernel={cfg["k2name"]} grid=(256,1,1) block=(256,1,1) lds=163840\n'
    out += '.amdgcn_target "amdgcn-amd-amdhsa--gfx950"\n.text\n'
    out += k1 + k2
    out += '.fill 8192, 4, 0xbf800000\n'
    out += '.section .rodata,"a"\n' + kd(cfg['k1name'], 512, 256, 80) + kd(cfg['k2name'], 112 + k2a, 112, 80)
    return out

if __name__ == '__main__':
    cfg = {}
    outp = 'standalone__mha_block_cached__near_ridge.s'
    for a in sys.argv[1:]:
        if a.endswith('.s'):
            outp = a
        else:
            k, v = a.split('=')
            try: v = int(v)
            except ValueError: v = v.replace('+', ' ')
            cfg[k] = v
    open(outp, 'w').write(build(cfg))
    print('wrote', outp)
```

```python
import copy

def V(n, c=1):
    return ('v', n, c)

def A(n, c=1):
    return ('a', n, c)

def rtxt(r):
    k, n, c = r
    return f'{k}{n}' if c == 1 else f'{k}[{n}:{n+c-1}]'

def rset(*rs):
    s = set()
    for r in rs:
        if r is None or isinstance(r, (str, int, float)):
            continue
        k, n, c = r
        base = 0 if k == 'v' else 256
        s.update(range(base + n, base + n + c))
    return s


class I:
    __slots__ = ('text', 'kind', 'rd', 'wr', 'tag', 'csrc')

    def __init__(self, text, kind, rd=(), wr=(), tag=None, csrc=()):
        self.text = text
        self.kind = kind
        self.rd = set(rd)
        self.wr = set(wr)
        self.tag = tag
        self.csrc = set(csrc)


def mfma(d, a, b, c):
    ct = '0' if c == 0 else rtxt(c)
    return I(f'v_mfma_f32_16x16x32_bf16 {rtxt(d)}, {rtxt(a)}, {rtxt(b)}, {ct}', 'mfma',
             rset(a, b, None if c == 0 else c), rset(d), csrc=rset(None if c == 0 else c))

def valu(op, d, *srcs, kind='valu', extra=''):
    st = ', '.join(rtxt(s) if isinstance(s, tuple) else str(s) for s in srcs)
    return I(f'{op} {rtxt(d)}, {st}{extra}', kind, rset(*srcs), rset(d))

def vexp(d, s):
    return valu('v_exp_f32', d, s, kind='trans')

def ds_read(op, d, addr, off):
    assert 0 <= off < 65536, off
    return I(f'{op} {rtxt(d)}, {rtxt(addr)} offset:{off}', 'ldsr', rset(addr), rset(d))

def ds_write(op, addr, s, off):
    assert 0 <= off < 65536, off
    return I(f'{op} {rtxt(addr)}, {rtxt(s)} offset:{off}', 'ldsw', rset(addr, s), ())

def bload(op, d, voff, srd, soff, off=0, flags='', tag=None):
    assert 0 <= off < 4096, off
    o = f' offset:{off}' if off else ''
    return I(f'{op} {rtxt(d)}, {rtxt(voff)}, s[{srd}:{srd+3}], {soff} offen{o}{flags}', 'vld',
             rset(voff), rset(d), tag=tag)

def bdma(voff, srd, soff, flags='', tag=None):
    return I(f'buffer_load_dwordx4 {rtxt(voff)}, s[{srd}:{srd+3}], {soff} offen{flags} lds', 'dma',
             rset(voff), (), tag=tag)

def bstore(op, s, voff, srd, soff, off=0, flags='', tag=None):
    assert 0 <= off < 4096, off
    o = f' offset:{off}' if off else ''
    return I(f'{op} {rtxt(s)}, {rtxt(voff)}, s[{srd}:{srd+3}], {soff} offen{o}{flags}', 'vst',
             rset(voff, s), (), tag=tag)

def salu(text):
    return I(text, 'salu')


class Stream:
    def __init__(self):
        self.out = []
        self.n = 0
        self.lg = []
        self.vm = []
        self.lastw = {}
        self.lastc = {}
        self.laststore = {}
        self.m0w = -10
        self.nops = 0
        self.maxvm = 0
        self.allvm = []

    def state(self):
        return (self.n, list(self.lg), list(self.vm), dict(self.lastw), dict(self.lastc),
                dict(self.laststore), self.m0w)

    def comment(self, t):
        self.out.append(f'; {t}')

    def label(self, name):
        self.out.append(f'{name}:')

    def raw(self, text, n=1):
        self.out.append('\t' + text)
        self.n += n

    def _need(self, pend, regs):
        k = -1
        for i, op in enumerate(pend):
            if op.wr & regs:
                k = i
        return k

    def wait(self, vm=None, lg=None):
        parts = []
        if vm is not None and len(self.vm) > vm:
            assert vm <= 63
            parts.append(f'vmcnt({vm})')
            self.vm = self.vm[len(self.vm) - vm:] if vm else []
        if lg is not None and len(self.lg) > lg:
            lg = min(lg, 15)
            parts.append(f'lgkmcnt({lg})')
            self.lg = self.lg[len(self.lg) - lg:] if lg else []
        if parts:
            self.out.append('\ts_waitcnt ' + ' '.join(parts))
            self.n += 1
            return True
        return False

    def force_wait(self, vm=None, lg=None):
        parts = []
        if vm is not None:
            parts.append(f'vmcnt({vm})')
            if len(self.vm) > vm:
                self.vm = self.vm[len(self.vm) - vm:] if vm else []
        if lg is not None:
            parts.append(f'lgkmcnt({lg})')
            if len(self.lg) > lg:
                self.lg = self.lg[len(self.lg) - lg:] if lg else []
        self.out.append('\ts_waitcnt ' + ' '.join(parts))
        self.n += 1

    def prewait(self, *ins):
        regs = set()
        for i in ins:
            regs |= i.rd | i.wr
        kl = self._need(self.lg, regs)
        kv = self._need(self.vm, regs)
        return self.wait(vm=(len(self.vm) - 1 - kv) if kv >= 0 else None,
                         lg=(len(self.lg) - 1 - kl) if kl >= 0 else None)

    def wait_tag(self, pred, lg=None):
        k = -1
        for i, op in enumerate(self.vm):
            if op.tag is not None and pred(op.tag):
                k = i
        n = (len(self.vm) - 1 - k) if k >= 0 else None
        if n is not None and n > 63:
            n = 63
        return self.wait(vm=n, lg=lg)

    def nop(self, k):
        while k > 0:
            c = min(k, 16)
            self.out.append(f'\ts_nop {c-1}')
            self.n += c
            self.nops += c
            k -= c

    def emit(self, ins):
        if isinstance(ins, (list, tuple)):
            for i in ins:
                self.emit(i)
            return
        k = ins.kind
        self.prewait(ins)
        need = 0
        def dist(n0):
            return self.n - n0 - 1
        isv = k in ('valu', 'trans', 'perm')
        for r in ins.rd:
            lw = self.lastw.get(r)
            if lw is None:
                continue
            wk, wn = lw
            req = 0
            if wk == 'mfma':
                if k == 'mfma':
                    if r in ins.csrc and not (r in (ins.rd - ins.csrc)):
                        req = 0
                    else:
                        req = 8
                else:
                    req = 8
            elif wk in ('valu', 'trans', 'perm'):
                if k == 'mfma':
                    req = 2
                elif k == 'perm':
                    req = 2
                elif wk == 'trans' and isv and k != 'trans':
                    req = 1
                elif wk == 'trans':
                    req = 1
            need = max(need, req - dist(wn))
        for r in ins.wr:
            lw = self.lastw.get(r)
            if lw is not None and lw[0] == 'mfma' and k != 'mfma':
                need = max(need, 8 - dist(lw[1]))
            if lw is not None and lw[0] == 'mfma' and k == 'mfma' and r not in ins.csrc:
                pass
            if isv and r in self.lastc:
                need = max(need, 3 - dist(self.lastc[r]))
            if r in self.laststore:
                need = max(need, 2 - dist(self.laststore[r]))
        if k == 'dma':
            need = max(need, 1 - dist(self.m0w))
        if need > 0:
            self.nop(need)
        self.out.append('\t' + ins.text)
        me = self.n
        self.n += 1
        if k == 'salu' and ins.text.split()[1].startswith('m0'):
            self.m0w = me
        for r in ins.wr:
            self.lastw[r] = (k, me)
        for r in ins.csrc:
            self.lastc[r] = me
        if k == 'vst':
            for r in ins.rd:
                self.laststore[r] = me
        if k in ('ldsr', 'ldsw'):
            self.lg.append(ins)
        if k in ('vld', 'dma', 'vst'):
            self.vm.append(ins)
            self.allvm.append(ins)
            assert len(self.vm) <= 63, 'more than 63 vm ops outstanding'
            self.maxvm = max(self.maxvm, len(self.vm))

    def text(self):
        return '\n'.join(self.out) + '\n'


COST = {'valu': 1, 'perm': 1, 'trans': 2, 'ldsr': 1, 'ldsw': 1, 'vld': 1, 'dma': 1, 'vst': 1}


class Op:
    def __init__(self, ins, lo, hi, deps=(), it=0, name=''):
        self.ins = ins if isinstance(ins, list) else [ins]
        self.lo, self.hi = lo, hi
        self.deps = list(deps)
        self.gap = None
        self.name = name
        self.cost = sum(COST.get(i.kind, 0) for i in self.ins)
        self.ismem = any(i.kind in ('ldsr', 'ldsw', 'vld', 'dma', 'vst') for i in self.ins)


def schedule(ops, ngaps, modulo=True, cap=2, extra_every=None, verbose=False):
    total = sum(o.cost for o in ops)
    over = max(0, total - cap * ngaps)
    capv = [cap] * ngaps
    if over:
        step = ngaps / over
        for k in range(over):
            capv[int(k * step + step / 2) % ngaps] += 1
    if not modulo:
        capv += [cap] * 256
    used = [0] * len(capv)
    mem = [0] * len(capv)
    pend = sorted(ops, key=lambda o: (o.hi, o.lo))
    lo_all = min(o.lo for o in ops)
    hi_all = max(o.hi for o in ops)
    g = lo_all if modulo else max(lo_all, 0)
    forced = 0
    while pend:
        assert g <= hi_all + 64, 'schedule overflow'
        gm = g % ngaps if modulo else g
        progress = True
        while progress:
            progress = False
            for o in pend:
                if o.lo > g:
                    continue
                ok = all(d.gap is not None and d.gap + dd <= g for d, dd in o.deps)
                if not ok:
                    continue
                must = o.hi <= g
                fits = used[gm] + o.cost <= capv[gm] and not (o.ismem and mem[gm] >= 1 and not must)
                if fits or must:
                    if must and not fits:
                        forced += 1
                    o.gap = g
                    used[gm] += o.cost
                    mem[gm] += o.ismem
                    pend.remove(o)
                    progress = True
                    break
        g += 1
    est = sum(max(16, 8 + 4 * u) for u in used[:ngaps])
    if verbose:
        print(f'schedule: {len(ops)} ops, cost {total}, gaps {ngaps}, forced {forced}, est cycles {est}')
    return est
```

```python
import sys, math, struct
sys.path.insert(0, 'gen')
from asmlib import *

B, SQ, D, H, SK, DH = 8, 224, 576, 32, 512, 128
W_BYTES = D * H * DH * 2
OUT_BYTES = B * SQ * D * 2
O_BYTES = B * SQ * H * DH * 2
FLAG_OFF = O_BYTES
SCALE = (DH ** -0.5) * math.log2(math.e)
QST = 45056
NAME = 'standalone__mha_block_cached__near_ridge_kernel'

def f32hex(x):
    return '0x%08x' % struct.unpack('<I', struct.pack('<f', x))[0]

vL16 = V(2)
vKdma, vVdma, vWOdma, vTch = V(3), V(4), V(5), V(6)
def vRA(kind, T, hi): return V(8 + 4 * kind + 2 * T + hi)
vT0, vT1, vT2, vT3 = V(20), V(21), V(22), V(23)
def Lr(j): return V(24 + j)
def Pb(b, k=None): return V(28 + 4 * b, 4) if k is None else V(28 + 4 * b + k)
def Sb(b, kt=None, r=None):
    if r is not None: return V(40 + 8 * b + 4 * kt + r)
    return V(40 + 8 * b + 4 * kt, 4)
def Qr(j, ds, k=None): return V(64 + 16 * j + 4 * ds, 4) if k is None else V(64 + 16 * j + 4 * ds + k)
def Or(j, dt, k=None): return V(128 + 32 * j + 4 * dt, 4) if k is None else V(128 + 32 * j + 4 * dt + k)
def Kf(T, kt, ds): return A(64 * T + 16 * kt + 4 * ds, 4)
def Vf(T, dt, a=None): return A(64 * T + 32 + 4 * dt, 4) if a is None else A(64 * T + 32 + 4 * dt + 2 * a, 2)
vXdma, vWdma = V(28), V(29)
vWl = [[V(30), V(31)], [V(32), V(33)]]
vWa = [[V(34), V(35)], [V(36), V(37)]]
vXl = [[V(38), V(39)], [V(40), V(41)]]
vXa = [[V(42), V(43)], [V(44), V(45)]]
vTo = V(46)
def Wf(i, v=None): return A(128 + 4 * i, 4) if v is None else A(128 + 4 * i + 2 * v, 2)
def Xf(ks, j): return A(160 + 16 * (ks & 1) + 4 * j, 4)

sX, sWQ, sK, sV, sWS, sWO, sOUT, sDBG, sTS = 4, 8, 12, 16, 20, 24, 28, 32, 36
sWAVE, sP, sPP, sB, sH = 40, 41, 42, 43, 44
sWoff, sWm0, sXm0, sKVm0, sT, sT2 = 45, 46, 47, 48, 49, 50
sOQ = [52, 53, 54, 55]
sC = 56
sMT, sNT, sTQ, sWOg, sWOm0, sXCC, sFLAG = 58, 59, 60, 61, 62, 63, 64
sR = [66, 67, 68, 69]


class Seq:
    n = 0
def mkop(ins, lo, hi, deps=(), name=''):
    o = Op(ins, lo, hi, deps, name=name)
    o.seq = Seq.n
    Seq.n += 1
    return o


def emit_gaps(st, mf, ops, sal, fixed):
    bygap = {}
    for o in ops:
        bygap.setdefault(min(o.gap, len(mf) - 1), []).append(o)
    sq = sorted(sal, key=lambda t: (t[0], t[1]))
    for g in range(len(mf)):
        st.emit(mf[g])
        shadow = False
        for fx in fixed.get(g, []):
            fx(st)
            shadow = True
        here = bygap.get(g, [])
        if g + 1 < len(mf) and st.prewait(mf[g + 1]):
            shadow = True
        while sq and (sq[0][1] <= g or (not shadow and sq[0][0] <= g)):
            st.emit(sq.pop(0)[2])
            shadow = True
        here.sort(key=lambda o: (o.gap, 0 if o.ismem else 1, o.seq))
        for o in here:
            st.emit(o.ins)
    for s in sq:
        st.emit(s[2])


def hoist_salu(ops, sal):
    pg = -1
    for o in sorted([o for o in ops if o.ins[-1].kind in ('dma', 'vld')], key=lambda o: (o.gap, o.seq)):
        pre = o.ins[:-1]
        if pre and all(i.kind == 'salu' and 'cmp' not in i.text for i in pre) and pg + 1 <= o.gap:
            for k, i in enumerate(pre):
                sal.append((max(pg + 1, o.gap - 3) + 0.01 * k, o.gap, i))
            o.ins = o.ins[-1:]
        pg = o.gap


def place_queue(queue, ops, ngaps, checks=None):
    prev, cur = None, 0
    for k, (g_, pace, grp) in enumerate(queue):
        g = max(g_, cur)
        if g >= ngaps - 3:
            return [q[2] for q in queue[k:]]
        if checks:
            checks(grp[-1].tag, g)
        o = mkop(grp, g, g + 3, deps=[(prev, 1)] if prev else [], name='gl')
        ops.append(o)
        prev = o
        cur = g + pace
    return []


def gen(cfg):
    st = Stream()
    E = st.emit
    R = st.raw
    RD = cfg.get('rd', 3)
    KVF = ' nt'
    WF = cfg.get('wf', '')
    def stamp(i):
        if cfg.get('stamp'):
            R(f's_memrealtime s[{80+2*i}:{81+2*i}]')

    def kv_dma_tile(t):
        slot = t % (2 * RD)
        L = []
        for which, srd, voff in ((0, sK, vKdma), (1, sV, vVdma)):
            pre = [salu(f's_add_u32 m0, s{sKVm0}, {slot * 16384 + which * 8192}')]
            if which == 0:
                pre.append(salu(f's_mov_b32 s{sT}, {t * 8192}'))
            L.append(pre + [I(f'buffer_load_dwordx4 {rtxt(voff)}, s[{srd}:{srd+3}], s{sT} offen{KVF} lds', 'dma', rset(voff), (), tag=('kv', t))])
            L.append([I(f'buffer_load_dwordx4 {rtxt(voff)}, s[{srd}:{srd+3}], s{sT} offen offset:2048{KVF} lds', 'dma', rset(voff), (), tag=('kv', t))])
        return L

    def w_dma_stage(s):
        L = []
        for kk in range(2):
            for hw in range(2):
                goff = (64 * s + 32 * kk + 16 * hw) * 8192
                loff = (s % 3) * QST + 1024 * (8 * kk + hw)
                L.append([salu(f's_add_u32 m0, s{sWm0}, {loff}'),
                          salu(f's_add_u32 s{sT2}, s{sWoff}, {goff}'),
                          bdma(vWdma, sWQ, f's{sT2}', flags=WF, tag=('w', s))])
        return L

    def x_dma_stage(s):
        return [[salu(f's_add_u32 m0, s{sXm0}, {(s % 3) * QST + 16384 + 4096 * k}'),
                 salu(f's_mov_b32 s{sT2}, {k * 36864 + 128 * s}'),
                 bdma(vXdma, sX, f's{sT2}', flags=WF, tag=('w', s))] for k in range(7)]

    free_d = list(range(RD, 5))
    late_d = [(8 - RD + k) % RD for k in range(RD)]
    DMAP = free_d + late_d
    def wo_lds(kp):
        i = kp % 10
        return 32768 * DMAP[i // 2] + 4096 * (i % 2)
    def wo_dma(kp):
        return [[salu(f's_add_u32 m0, s{sWOm0}, {wo_lds(kp) + 1024 * kb}'),
                 salu(f's_add_u32 s{sT2}, s{sWOg}, {(32 * kp + 8 * kb) * 1152}'),
                 bdma(vWOdma, sWO, f's{sT2}', tag=('wo', kp))] for kb in range(4)]

    st.out.append(f'.globl {NAME}\n.p2align 8\n.type {NAME},@function\n{NAME}:')
    R('s_cmp_ge_u32 s2, 256')
    R('s_cbranch_scc1 L_end')
    R('s_load_dwordx8 s[72:79], s[0:1], 0')
    R(f's_load_dwordx2 s[{sWO}:{sWO+1}], s[0:1], 32')
    R(f's_load_dwordx2 s[{sOUT}:{sOUT+1}], s[0:1], 40')
    R(f's_load_dwordx2 s[{sDBG}:{sDBG+1}], s[0:1], 48')
    R(f's_load_dwordx2 s[{sWS}:{sWS+1}], s[0:1], 56')
    if cfg.get('stamp'):
        for i in range(80, 102, 2):
            R(f's_mov_b64 s[{i}:{i+1}], 0')
    stamp(0)
    R('v_and_b32 v1, 63, v0')
    R('v_lshrrev_b32 v20, 6, v0')
    R(f's_and_b32 s{sB}, s2, 7')
    R(f'v_readfirstlane_b32 s{sWAVE}, v20')
    R(f's_lshr_b32 s{sH}, s2, 3')
    R('v_lshrrev_b32 v21, 3, v0')
    R('v_mul_u32_u24 v28, 1152, v21')
    R('v_and_b32 v22, 7, v1')
    R('v_bfe_u32 v23, v0, 4, 3')
    R('v_xor_b32 v22, v22, v23')
    R('v_lshl_add_u32 v28, v22, 4, v28')
    R('v_bfe_u32 v21, v1, 2, 3')
    R('v_bfe_u32 v22, v1, 4, 1')
    R('v_lshlrev_b32 v22, 1, v22')
    R('v_and_b32 v23, 3, v1')
    R('v_xor_b32 v23, v23, v22')
    R('v_lshrrev_b32 v22, 5, v1')
    R('v_lshlrev_b32 v26, 6, v22')
    R('v_lshl_add_u32 v27, v23, 4, v26')
    R('v_and_b32 v24, 3, v21')
    R('v_lshrrev_b32 v25, 2, v21')
    R('v_lshl_add_u32 v24, v25, 3, v24')
    R('v_lshl_add_u32 v29, v24, 13, v27')
    R(f's_and_b32 s{sP}, s{sWAVE}, 1')
    R(f's_lshr_b32 s{sPP}, s{sWAVE}, 1')
    R(f's_lshl_b32 s{sXm0}, s{sWAVE}, 10')
    R(f's_lshl_b32 s{sWoff}, s{sPP}, 15')
    R(f's_lshl_b32 s70, s{sP}, 7')
    R(f's_add_u32 s{sWoff}, s{sWoff}, s70')
    R(f's_lshl_b32 s{sWm0}, s{sWAVE}, 11')
    R(f's_mul_i32 s70, s{sB}, {SQ * D * 2}')
    R(f's_lshl_b32 s71, s{sH}, 8')
    R(f's_mov_b32 s{sX+2}, {SQ * D * 2}')
    R(f's_mov_b32 s{sX+3}, 0x20000')
    R(f's_sub_u32 s{sWQ+2}, {W_BYTES}, s71')
    R(f's_mov_b32 s{sWQ+3}, 0x20000')
    R('s_waitcnt lgkmcnt(0)')
    R(f's_add_u32 s{sX}, s72, s70')
    R(f's_addc_u32 s{sX+1}, s73, 0')
    R(f's_add_u32 s{sWQ}, s78, s71')
    R(f's_addc_u32 s{sWQ+1}, s79, 0')
    for grp in w_dma_stage(0) + x_dma_stage(0):
        E(grp)
    R(f's_lshl_b32 s70, s{sB}, 5')
    R(f's_add_u32 s70, s70, s{sH}')
    R('s_lshl_b32 s70, s70, 17')
    R(f's_add_u32 s{sK}, s74, s70')
    R(f's_addc_u32 s{sK+1}, s75, 0')
    R(f's_mov_b32 s{sK+2}, 0x20000')
    R(f's_mov_b32 s{sK+3}, 0x20000')
    R(f's_add_u32 s{sV}, s76, s70')
    R(f's_addc_u32 s{sV+1}, s77, 0')
    R(f's_mov_b32 s{sV+2}, 0x20000')
    R(f's_mov_b32 s{sV+3}, 0x20000')
    R(f's_mov_b32 s{sWS+2}, {0x10000000 if cfg.get("stamp") else FLAG_OFF + 1024}')
    R(f's_mov_b32 s{sWS+3}, 0x20000')
    R(f's_mov_b32 s{sWO+2}, {W_BYTES}')
    R(f's_mov_b32 s{sWO+3}, 0x20000')
    R(f's_mov_b32 s{sOUT+2}, {OUT_BYTES}')
    R(f's_mov_b32 s{sOUT+3}, 0x20000')
    R(f's_mov_b32 s{sDBG+2}, 256')
    R(f's_mov_b32 s{sDBG+3}, 0x20000')
    wsh, nh, rs = 8, 32, 7
    TF = cfg.get('tf', '')
    R('v_and_b32 v47, 127, v0')
    R(f'v_lshlrev_b32 v48, 3, v47')
    R(f'v_add_u32 v48, s{sB}, v48')
    R('v_lshrrev_b32 v49, 1, v48')
    R('v_lshlrev_b32 v49, 13, v49')
    R('v_and_b32 v48, 1, v48')
    R('v_lshl_add_u32 v49, v48, 7, v49')
    R(f'v_add_u32 v49, {64 * 8192}, v49')
    magic = 65536 // rs + 1
    assert all((u * magic) >> 16 == u // rs for u in range(128))
    R(f'v_mul_u32_u24 v48, {magic}, v47')
    R('v_lshrrev_b32 v48, 16, v48')
    R(f'v_mul_u32_u24 v50, {rs}, v48')
    R('v_sub_u32 v50, v47, v50')
    R('v_lshlrev_b32 v50, 5, v50')
    R(f'v_add_u32 v50, s{sH}, v50')
    R('v_mul_u32_u24 v50, 1152, v50')
    R('v_lshl_add_u32 v50, v48, 7, v50')
    R('v_add_u32 v50, 128, v50')
    R('v_mov_b32 v51, 0x7fffff00')
    R('v_cmp_gt_u32 vcc, 8, v48')
    R(f's_cmp_lt_u32 s{sWAVE}, 2')
    R(f's_cselect_b32 s{sTS}, s{sWQ}, s{sX}')
    R('v_cndmask_b32 v50, v51, v50, vcc')
    R('s_cselect_b64 vcc, -1, 0')
    R(f's_cselect_b32 s{sTS+1}, s{sWQ+1}, s{sX+1}')
    R(f's_cselect_b32 s{sTS+2}, s{sWQ+2}, s{sX+2}')
    R(f's_mov_b32 s{sTS+3}, 0x20000')
    R('v_cndmask_b32 v46, v50, v49, vcc')
    if cfg.get('touch', 1):
        E(bload('buffer_load_dword', V(48), vTo, sTS, '0', flags=TF, tag=('t', 0)))
    if cfg.get('codepf', 1):
        R('s_getpc_b64 s[70:71]')
        R('v_and_b32 v49, 15, v0')
        R(f's_lshl_b32 s72, s{sH}, 4')
        R('v_add_u32 v49, s72, v49')
        R('v_lshlrev_b32 v49, 7, v49')
        E(I('global_load_dword v51, v49, s[70:71]', 'vld', rset(V(49)), rset(V(51))))
    R(f's_getreg_b32 s{sXCC}, hwreg(HW_REG_XCC_ID)')
    R(f's_and_b32 s{sXCC}, s{sXCC}, 7')
    R(f's_lshl_b32 s{sFLAG}, s{sB}, 7')
    R(f's_add_u32 s{sFLAG}, s{sFLAG}, {FLAG_OFF}')
    R('v_mov_b32 v7, 0')
    R(f's_cmp_lg_u32 s{sWAVE}, 0')
    R('s_cbranch_scc1 L_noreset')
    R(f's_lshl_b32 s70, s{sH}, 2')
    R(f's_add_u32 s70, s70, s{sFLAG}')
    R('s_mov_b64 exec, 1')
    R(f'buffer_store_dword v7, v7, s[{sWS}:{sWS+3}], s70 offen')
    R('s_mov_b64 exec, -1')
    st.label('L_noreset')
    for grp in w_dma_stage(1) + x_dma_stage(1):
        E(grp)
    R('v_lshlrev_b32 v2, 4, v1')
    R('v_lshlrev_b32 v24, 8, v21')
    R('v_add_u32 v4, v24, v27')
    R('v_add_u32 v3, v24, v26')
    R('v_and_b32 v24, 1, v23')
    R('v_lshl_add_u32 v3, v24, 5, v3')
    R('v_lshrrev_b32 v24, 1, v23')
    R('v_lshl_add_u32 v3, v24, 4, v3')
    R('v_mul_u32_u24 v5, 1152, v21')
    R('v_add_u32 v5, v5, v27')
    R(f's_lshl_b32 s70, s{sP}, 7')
    R(f's_lshl_b32 s71, s{sPP}, 12')
    R('s_add_u32 s70, s70, s71')
    R('v_add_u32 v3, s70, v3')
    R('v_add_u32 v4, s70, v4')
    R(f's_lshl_b32 s{sKVm0}, s{sP}, 10')
    R(f's_add_u32 s{sKVm0}, s{sKVm0}, s71')
    R('v_lshrrev_b32 v20, 4, v1')
    R('v_and_b32 v21, 15, v1')
    R('v_lshrrev_b32 v23, 2, v21')
    R('v_lshlrev_b32 v22, 6, v23')
    R('v_and_b32 v23, 3, v21')
    R('v_lshl_add_u32 v22, v23, 3, v22')
    R('v_and_b32 v23, 1, v20')
    R('v_mul_u32_u24 v23, 288, v23')
    R('v_add_u32 v22, v23, v22')
    R('v_lshrrev_b32 v23, 1, v20')
    R('v_lshl_add_u32 v30, v23, 10, v22')
    R('v_mov_b32 v7, v30')
    R('v_lshl_add_u32 v22, v23, 11, v22')
    R(f's_lshl_b32 s70, s{sP}, 11')
    R('s_sub_u32 s71, 0x800, s70')
    R('v_add_u32 v32, s71, v30')
    R('v_add_u32 v30, s70, v30')
    R('v_xor_b32 v31, 32, v30')
    R('v_xor_b32 v33, 32, v32')
    R('v_lshrrev_b32 v24, 3, v21')
    R('v_lshlrev_b32 v23, 11, v24')
    R('v_and_b32 v24, 7, v21')
    R('v_lshl_add_u32 v23, v24, 6, v23')
    R('v_bfe_u32 v24, v21, 2, 1')
    R('v_lshlrev_b32 v24, 1, v24')
    R('v_xor_b32 v24, v24, v20')
    R('v_lshl_add_u32 v23, v24, 4, v23')
    R(f's_lshl_b32 s70, s{sP}, 14')
    R('s_sub_u32 s71, 0x4000, s70')
    for T, sr in ((0, 's70'), (1, 's71')):
        R(f'v_add_u32 {rtxt(vRA(0, T, 0))}, {sr}, v23')
        R(f'v_add_u32 {rtxt(vRA(1, T, 0))}, {sr}, v22')
        R(f'v_xor_b32 {rtxt(vRA(2, T, 0))}, 32, {rtxt(vRA(1, T, 0))}')
        for kind in range(3):
            R(f'v_add_u32 {rtxt(vRA(kind, T, 1))}, 0x10000, {rtxt(vRA(kind, T, 0))}')
    R('v_lshrrev_b32 v24, 1, v21')
    R('v_xor_b32 v24, v24, v20')
    R('v_lshlrev_b32 v38, 7, v21')
    R('v_lshl_add_u32 v38, v24, 4, v38')
    R(f's_mul_i32 s70, s{sPP}, 7')
    R(f's_lshl_b32 s71, s{sP}, 2')
    R('s_add_u32 s71, s71, s70')
    R('s_add_u32 s70, s70, 3')
    R('s_lshl_b32 s72, s70, 11')
    R('s_add_u32 s72, s72, 0x4000')
    R('v_add_u32 v40, s72, v38')
    R('s_lshl_b32 s72, s71, 11')
    R('s_add_u32 s72, s72, 0x4000')
    R('v_add_u32 v38, s72, v38')
    R('v_xor_b32 v39, 64, v38')
    R('v_xor_b32 v41, 64, v40')
    R(f's_mul_i32 s72, s{sB}, 14')
    R('s_add_u32 s71, s71, s72')
    R('s_add_u32 s70, s70, s72')
    R(f's_lshl_b32 s73, s{sH}, 12')
    R('s_lshl_b32 s71, s71, 17')
    R('s_lshl_b32 s70, s70, 17')
    R(f's_add_u32 s{sOQ[0]}, s71, s73')
    R(f's_add_u32 s{sOQ[1]}, s{sOQ[0]}, 0x20000')
    R(f's_add_u32 s{sOQ[2]}, s{sOQ[0]}, 0x40000')
    R(f's_add_u32 s{sOQ[3]}, s70, s73')
    R(f's_mov_b32 s{sC}, {f32hex(SCALE)}')
    R(f's_mov_b32 s{sC+1}, {f32hex(SCALE)}')
    R(f's_and_b32 s70, s{sB}, 1')
    R('s_lshl_b32 s70, s70, 5')
    R(f's_add_u32 s70, s70, s{sH}')
    R(f's_mul_hi_u32 s{sTQ}, s70, 0x1c71c71d')
    R(f's_mul_i32 s71, s{sTQ}, 9')
    R(f's_sub_u32 s{sNT}, s70, s71')
    R(f's_lshr_b32 s71, s{sB}, 1')
    R('s_mul_i32 s71, s71, 7')
    R(f's_add_u32 s{sMT}, s71, s{sTQ}')
    R(f's_mul_i32 s{sWOg}, s{sWAVE}, {1024 * 1152}')
    R(f's_lshl_b32 s71, s{sNT}, 7')
    R(f's_add_u32 s{sWOg}, s{sWOg}, s71')
    R(f's_lshl_b32 s{sWOm0}, s{sWAVE}, 13')
    for i in range(4):
        R(f's_lshl_b32 s{sR[i]}, s{sMT}, 19')
        R(f's_lshl_b32 s71, s{sWAVE}, 15')
        R(f's_add_u32 s{sR[i]}, s{sR[i]}, s71')
        if i:
            R(f's_add_u32 s{sR[i]}, s{sR[i]}, {i * 0x20000}')
    R('v_lshlrev_b32 v6, 7, v0')
    R('v_mov_b32 v24, 0x7fffff00')
    R('v_cmp_gt_u32 vcc, 144, v0')
    R('s_nop 1')
    R('v_cndmask_b32 v6, v24, v6, vcc')
    for j in range(4):
        E(valu('v_mov_b32', Lr(j), 0))

    def wread(ks, i):
        kk = ks % 2
        return [ds_read('ds_read_b64_tr_b16', Wf(i, v), vWa[i >> 2][i & 1], 1024 * (8 * kk + 4 * v) + 512 * ((i >> 1) & 1))
                for v in range(2)]
    def waddr(s):
        return ([valu('v_add_u32', vWa[a][b], (s % 3) * QST, vWl[a][b]) for a in range(2) for b in range(2)] +
                [valu('v_add_u32', vXa[a][b], (s % 3) * QST, vXl[a][b]) for a in range(2) for b in range(2)])
    def xread(ks, j):
        return ds_read('ds_read_b128', Xf(ks, j), vXa[j == 3][ks & 1], 0 if j == 3 else 2048 * j)

    BQ = 8
    bar_gap = {s: 28 * (2 * s - 1) + BQ for s in range(1, 9)}
    E(waddr(0))
    st.wait_tag(lambda t: t == ('w', 0))
    R('s_barrier')
    stamp(2)
    for j in range(4):
        E(xread(0, j))
    for i in range(8):
        E(wread(0, i))

    mf = []
    first, last = {}, {}
    for ks in range(18):
        for i in range(8):
            first[(ks, i)] = len(mf)
            for j in range(4 if i < 4 else 3):
                acc = Or(j, i)
                mf.append(mfma(acc, Wf(i), Xf(ks, j), 0 if ks == 0 else acc))
            last[(ks, i)] = len(mf) - 1
    NG = len(mf)
    ops, fixed, sal = [], {}, []
    LAT = cfg.get('lat', 10)
    def register(st_):
        st_.raw(f's_cmp_lg_u32 s{sWAVE}, 0')
        st_.raw('s_cbranch_scc1 L_noreg')
        st_.raw(f's_lshl_b32 s70, s{sXCC}, 3')
        st_.raw('s_lshl_b64 s[70:71], 1, s70')
        st_.raw('v_mov_b32 v54, s70')
        st_.raw('v_mov_b32 v55, s71')
        st_.raw('v_mov_b32 v53, 0')
        st_.raw(f's_lshl_b32 s70, s{sB}, 3')
        st_.raw('s_mov_b64 exec, 1')
        st_.raw(f'buffer_atomic_add_x2 v[54:55], v53, s[{sDBG}:{sDBG+3}], s70 offen')
        st_.raw('s_mov_b64 exec, -1')
        st_.label('L_noreg')
        st_.raw('s_nop 3')
    for s in range(1, 9):
        def fx(st_, s=s):
            st_.wait_tag(lambda t: t == ('w', s), lg=0)
            st_.raw('s_barrier')
        fixed[bar_gap[s]] = [fx] + ([register] if s == cfg.get('regs', 1) else [])
        ops += [mkop(a_, bar_gap[s] - 6, bar_gap[s] - 1) for a_ in waddr(s)]
    for ks in range(1, 18):
        for i in range(8):
            lo = last[(ks - 1, i)]
            hi = first[(ks, i)] - LAT
            if ks % 2 == 0:
                lo = max(lo, bar_gap[ks // 2])
            else:
                hi = min(hi, 28 * ks + 1)
            for ins in wread(ks, i):
                ops.append(mkop(ins, lo, hi))
        for j in range(4):
            lo = bar_gap[ks // 2] if ks % 2 == 0 else 28 * (ks - 1)
            ops.append(mkop(xread(ks, j), lo, 28 * ks - LAT - 4 + j))
    queue = []
    pace, kvpace = cfg.get('pace', 4), cfg.get('kvpace', 3)
    for s_ in range(2, 9):
        for grp in w_dma_stage(s_) + x_dma_stage(s_):
            queue.append((-1 if s_ < 3 else bar_gap[s_ - 2] + 1, pace, grp))
    NKQ = cfg.get('nkq', 4)
    for t in range(NKQ):
        for grp in kv_dma_tile(t):
            queue.append((bar_gap[7 if t < 2 else 8] + 1, kvpace, grp))
    def chk(tag, g):
        if tag[0] == 'w':
            assert g + 6 < bar_gap[tag[1]], ('W late', tag, g)
    left = place_queue(queue, ops, NG, chk)
    schedule(ops, NG, modulo=False, verbose=True)
    assert all(o.gap <= o.hi or o.name == 'gl' for o in ops)
    hoist_salu(ops, sal)
    emit_gaps(st, mf, ops, sal, fixed)
    for grp in left:
        E(grp)

    stamp(3)
    SCR = 9 * 16384
    def conv(j, dsp, ds):
        X, Y = 2 * dsp, 2 * dsp + 1
        L = []
        for t in (X, Y):
            for k in (0, 2):
                r = V(128 + 32 * j + 4 * t + k, 2)
                L.append(I(f'v_pk_mul_f32 {rtxt(r)}, {rtxt(r)}, s[{sC}:{sC+1}]', 'valu', rset(r), rset(r)))
        L.append(valu('v_cvt_pk_bf16_f32', Qr(j, ds, 0), Or(j, X, 0), Or(j, X, 1)))
        L.append(valu('v_cvt_pk_bf16_f32', Qr(j, ds, 1), Or(j, X, 2), Or(j, X, 3)))
        L.append(valu('v_cvt_pk_bf16_f32', Qr(j, ds, 2), Or(j, Y, 0), Or(j, Y, 1)))
        L.append(valu('v_cvt_pk_bf16_f32', Qr(j, ds, 3), Or(j, Y, 2), Or(j, Y, 3)))
        return L
    def perm(op, a, b):
        return I(f'{op} {rtxt(a)}, {rtxt(b)}', 'perm', rset(a, b), rset(a, b))
    def swaps(j, ds):
        return [perm('v_permlane16_swap_b32', Qr(j, ds, k), Qr(j, ds, k + 2)) for k in range(2)]
    def restore(saved):
        (st.n, lg, vm, lw, lc, ls, st.m0w) = saved
        st.lg, st.vm, st.lastw, st.lastc, st.laststore = list(lg), list(vm), dict(lw), dict(lc), dict(ls)
    R(f's_lshl_b32 s70, s{sWAVE}, 12')
    R(f's_add_u32 s70, s70, {SCR}')
    R('s_xor_b32 s71, s70, 0x1000')
    E(valu('v_add_u32', vT0, 's70', vL16))
    E(valu('v_add_u32', vT1, 's71', vL16))
    R(f's_cmp_eq_u32 s{sP}, 1')
    R('s_cbranch_scc1 L_conv1')
    saved = st.state()
    for p in range(2):
        if p == 1:
            R('s_branch L_conv_done')
            st.label('L_conv1')
            restore(saved)
        for dsp in range(2):
            E(conv(3, dsp, dsp ^ (2 * p)))
        E(conv(0, 0, 0 ^ (2 * p)))
        for dsp in range(2):
            E(swaps(3, dsp ^ (2 * p)))
        for dsp in range(2):
            E(ds_write('ds_write_b128', vT0, Qr(3, dsp ^ (2 * p)), 1024 * dsp))
        todo = [(j, dsp) for j in range(3) for dsp in range(4)]
        prevc = todo[0]
        for (j, dsp) in todo[1:]:
            E(conv(j, dsp, dsp ^ (2 * p)))
            E(swaps(prevc[0], prevc[1] ^ (2 * p)))
            prevc = (j, dsp)
        st.wait_tag(lambda t: t in (('kv', 0), ('kv', 1)), lg=0)
        R('s_barrier')
        for dsp in range(2):
            ins = ds_read('ds_read_b128', Qr(3, (dsp ^ (2 * p)) ^ 2), vT1, 1024 * dsp)
            ins.wr = rset(V(112, 16)) if dsp else set()
            E(ins)
        E(swaps(prevc[0], prevc[1] ^ (2 * p)))
    st.label('L_conv_done')
    st.lastw = {r: (k, st.n - 1) if k != 'mfma' else (k, n) for r, (k, n) in st.lastw.items()}

    JQ = [0, 1, 2, 3, 0, 1, 2]
    def kread(it, T, kt, ds):
        d = it % RD
        return ds_read('ds_read_b128', Kf(T, kt, ds), vRA(0, T, d >> 1),
                       32768 * (d & 1) + 4096 * kt + 1024 * (ds >> 1) + 512 * (ds & 1))
    def vread(it, T, dt, a):
        d = it % RD
        return ds_read('ds_read_b64_tr_b16', Vf(T, dt, a), vRA(1 + (dt & 1), T, d >> 1),
                       32768 * (d & 1) + 8192 + 4096 * a + 1024 * (dt >> 2) + 512 * ((dt >> 1) & 1))
    NU = 56
    mf, pQK, pPV = [], {}, {}
    for stg in range(-1, NU + 1):
        U = stg + 1
        if U < NU:
            T = 0 if U % 7 < 4 else 1
            pQK[U] = len(mf)
            for kt in range(2):
                for ds in range(4):
                    s_ = Sb(U % 3, kt)
                    mf.append(mfma(s_, Kf(T, kt, ds), Qr(JQ[U % 7], ds), 0 if ds == 0 else s_))
        U = stg - 1
        if U >= 0:
            T = 0 if U % 7 < 4 else 1
            pPV[U] = len(mf)
            for dt in range(8):
                o_ = Or(JQ[U % 7], dt)
                mf.append(mfma(o_, Vf(T, dt), Pb(U % 3), 0 if U < 4 else o_))
    NA = len(mf)
    ops, fixed, sal = [], {}, []
    lastadd = {}
    for U in range(NU):
        b_ = U % 3
        j = JQ[U % 7]
        reuse = pQK.get(U + 3, NA + 8)
        pfree = pPV[U - 3] + 7 if U >= 3 else 0
        for kt in range(2):
            rdy = pQK[U] + 4 * kt + 3 + 3
            dl = max(pPV[U] - 2, rdy + 3)
            ex = []
            for r in range(4):
                e = mkop(vexp(Sb(b_, kt, r), Sb(b_, kt, r)), rdy, dl - 3 + (r // 2))
                ex.append(e)
                ops.append(e)
            for r in range(4):
                deps = [(ex[r], 1)]
                if j in lastadd: deps.append((lastadd[j], 0))
                a_ = mkop(valu('v_add_f32', Lr(j), Lr(j), Sb(b_, kt, r)), rdy, min(reuse + 4 * kt - 1, dl + 12), deps)
                ops.append(a_)
                lastadd[j] = a_
            for h_ in range(2):
                ops.append(mkop(valu('v_cvt_pk_bf16_f32', Pb(b_, 2 * kt + h_), Sb(b_, kt, 2 * h_), Sb(b_, kt, 2 * h_ + 1)),
                                max(rdy, pfree), dl, [(ex[2 * h_], 1), (ex[2 * h_ + 1], 1)]))
    LATA = cfg.get('lata', 9)
    BOFF = cfg.get('boff', 4)
    bg = {it: pQK[7 * it + 5] + BOFF for it in range(8)}
    pre_reads = []
    for it in range(8):
        avail = bg[it - 1] if it else -1
        for T in range(2):
            u0 = 7 * it + 4 * T
            ul = 7 * (it - 1) + (3 if T == 0 else 6)
            for kt in range(2):
                for ds in range(4):
                    f = 4 * kt + ds
                    ins = kread(it, T, kt, ds)
                    if it == 0 and T == 0:
                        pre_reads.append(ins)
                        continue
                    lo = max(avail, pQK[ul] + f if it else 0)
                    lo = max(lo, pQK[u0] - cfg.get('kwin', 40))
                    ops.append(mkop(ins, lo, min(pQK[u0] + f - LATA, bg[it] - 4)))
            for dt in range(8):
                for a in range(2):
                    lo = max(avail, pPV[ul] + dt if it else 0)
                    lo = max(lo, pPV[u0] - cfg.get('vwin', 56))
                    ops.append(mkop(vread(it, T, dt, a), lo, min(pPV[u0] + dt - LATA, bg[it] - 4)))
    for it in range(7):
        def fx(st_, it=it):
            st_.wait_tag(lambda t: t in (('kv', 2 * it + 2), ('kv', 2 * it + 3)), lg=0)
            st_.raw('s_barrier')
        fixed[bg[it]] = [fx]
    queue = []
    apace = cfg.get('apace', 8)
    for t in range(NKQ, 16):
        if t == 2 * RD and cfg.get('wotouch', 1):
            queue.append((cfg.get('wotg', 20), 4, [salu('s_mul_i32 s70, s2, 18432'),
                         bload('buffer_load_dword', V(0), vTch, sWO, 's70', tag=('t', 1))]))
        for grp in kv_dma_tile(t):
            if t < 2 * RD:
                queue.append((0, cfg.get('apace0', 4), grp))
            else:
                queue.append((bg[t // 2 - RD] + 1, apace, grp))
    queue.sort(key=lambda q: 0)
    nfree = 2 * len(free_d)
    wog = bg[8 - RD - 1] + cfg.get('wodelay', 40) if cfg.get('woearly', 1) else NA
    wopace = cfg.get('wopace', 4)
    for kp in range(8):
        g_ = wog if kp < nfree else max(wog, bg[8 - RD + (kp - nfree) // 2] + 1)
        if (kp - nfree) // 2 + 8 - RD >= 7 and kp >= nfree:
            break
        for grp in wo_dma(kp):
            queue.append((g_, wopace, grp))
    queue.append((bg[6], 4, [salu(f's_lshl_b32 s70, s{sB}, 3'),
                 valu('v_mov_b32', vT2, 0),
                 bload('buffer_load_dwordx2', V(22, 2), vT2, sDBG, 's70', flags=' sc1', tag=('reg', 0))]))
    def chk(tag, g):
        if tag[0] == 'kv' and tag[1] >= 2:
            assert g + 8 < bg[tag[1] // 2 - 1], ('kv late', tag, g)
    left = place_queue(queue, ops, NA, chk)
    schedule(ops, NA, modulo=False, verbose=True)
    late = [o for o in ops if o.gap > o.hi]
    for o in late: print('LATE', o.gap, o.hi, o.ins[-1].text)
    assert all(o.name == 'gl' for o in late)
    hoist_salu(ops, sal)
    E(pre_reads)
    stamp(4)
    emit_gaps(st, mf, ops, sal, fixed)
    for grp in left:
        E(grp)
    wo_issued = max([-1] + [o.tag[1] for o in st.allvm if o.tag and o.tag[0] == 'wo']) + 1
    print('nops', st.nops, 'max vm', st.maxvm, 'wo k-steps issued in attention', wo_issued)

    stamp(5)
    tmp = [V(40 + j) for j in range(4)]
    for op in ('v_permlane32_swap_b32', 'v_permlane16_swap_b32'):
        for j in range(4):
            E(valu('v_mov_b32', tmp[j], Lr(j)))
        for j in range(4):
            E(perm(op, Lr(j), tmp[j]))
        for j in range(4):
            E(valu('v_add_f32', Lr(j), Lr(j), tmp[j]))
    st.wait(lg=0)
    R('s_barrier')
    SC2 = 32768 * DMAP[4]
    R(f's_add_u32 s70, s{sWOm0}, {SC2}')
    R('s_xor_b32 s71, s70, 0x2000')
    E(valu('v_add_u32', vT0, 's71', vL16))
    E(valu('v_add_u32', vT1, 's70', vL16))
    vRI = [V(8), V(9), V(10), V(11)]
    OSF = cfg.get('ostore', ' sc1')
    def fin(j, s, ri, dst):
        L = []
        for t in (2 * s, 2 * s + 1):
            for k in (0, 2):
                r = V(128 + 32 * j + 4 * t + k, 2)
                rp = V(ri[1], 2) if ri[1] % 2 == 0 else V(ri[1] - 1, 2)
                sel = 'op_sel:[0,0] op_sel_hi:[1,0]' if ri[1] % 2 == 0 else 'op_sel:[0,1] op_sel_hi:[1,1]'
                L.append(I(f'v_pk_mul_f32 {rtxt(r)}, {rtxt(r)}, {rtxt(rp)} {sel}', 'valu', rset(r, ri), rset(r)))
        X, Y = 2 * s, 2 * s + 1
        L.append(valu('v_cvt_pk_bf16_f32', V(dst), Or(j, X, 0), Or(j, X, 1)))
        L.append(valu('v_cvt_pk_bf16_f32', V(dst + 1), Or(j, X, 2), Or(j, X, 3)))
        L.append(valu('v_cvt_pk_bf16_f32', V(dst + 2), Or(j, Y, 0), Or(j, Y, 1)))
        L.append(valu('v_cvt_pk_bf16_f32', V(dst + 3), Or(j, Y, 2), Or(j, Y, 3)))
        L.append(bstore('buffer_store_dwordx4', V(dst, 4), vL16, sWS, f's{sOQ[j]}', off=1024 * s, flags=OSF, tag=('ost', 0)))
        return L
    R(f's_cmp_eq_u32 s{sP}, 1')
    R('s_cbranch_scc1 L_ep1')
    saved = st.state()
    for p in range(2):
        if p == 1:
            R('s_branch L_ep_done')
            st.label('L_ep1')
            restore(saved)
        for k in range(4):
            E(ds_write('ds_write_b128', vT0, Or(3, 4 * (1 - p) + k), 1024 * k))
        E(ds_write('ds_write_b32', vT0, Lr(3), 4096))
        for j in range(3):
            E(valu('v_rcp_f32', vRI[j], Lr(j), kind='trans'))
        n = 0
        for s in range(4):
            E(fin(0, s, vRI[0], 64 + 4 * n))
            n += 1
        st.wait(lg=0)
        R('s_barrier')
        for k in range(4):
            E(ds_read('ds_read_b128', V(44 + 4 * k, 4), vT1, 1024 * k))
        E(ds_read('ds_read_b32', V(60), vT1, 4096))
        for j in range(1, 3):
            for s in range(4):
                E(fin(j, s, vRI[j], 64 + 4 * n))
                n += 1
        E(valu('v_add_f32', Lr(3), Lr(3), V(60)))
        E(valu('v_rcp_f32', vRI[3], Lr(3), kind='trans'))
        for k in range(4):
            for h_ in (0, 2):
                r = V(128 + 96 + 4 * (4 * p + k) + h_, 2)
                q = V(44 + 4 * k + h_, 2)
                E(I(f'v_pk_add_f32 {rtxt(r)}, {rtxt(r)}, {rtxt(q)}', 'valu', rset(r, q), rset(r)))
        for s in (2 * p, 2 * p + 1):
            E(fin(3, s, vRI[3], 112 + 4 * (s & 1)))
    st.label('L_ep_done')
    st.lastw = {r: (k, st.n - 1) for r, (k, n) in st.lastw.items()}
    stamp(6)

    NR = cfg.get('nr', 16)
    NG1 = cfg.get('ng1', 4)
    vWOr = [[V(12 + 2 * b + t) for t in range(2)] for b in range(3)]
    for b_ in range(3):
        R(f's_add_u32 s70, s{sWOm0}, {65536 * b_}')
        E(valu('v_add_u32', vWOr[b_][0], 's70', V(7)))
        E(valu('v_xor_b32', vWOr[b_][1], 32, vWOr[b_][0]))
    def Wreg(kp, sb, a=None):
        if kp < NR:
            mk, b0 = (A, 16 * kp) if kp < 16 else (V, 192 + 16 * (kp - 16))
        else:
            mk, b0 = V, 28 + 16 * (kp % 2)
        return mk(b0 + 4 * sb, 4) if a is None else mk(b0 + 4 * sb + 2 * a, 2)
    def wo_reads(kp):
        base = wo_lds(kp)
        return [ds_read('ds_read_b64_tr_b16', Wreg(kp, sb, a), vWOr[base >> 16][sb & 1],
                        (base & 0xffff) + 2048 * a + 512 * (sb >> 1)) for sb in range(4) for a in range(2)]
    st.wait(lg=0)
    nxt_dma = wo_issued
    while nxt_dma < 10:
        for grp in wo_dma(nxt_dma):
            E(grp)
        nxt_dma += 1
    def park(kp):
        nonlocal nxt_dma
        st.wait_tag(lambda t: t == ('wo', kp))
        E(wo_reads(kp))
        if kp >= 1 and nxt_dma < 32:
            st.wait(lg=8)
            for grp in wo_dma(nxt_dma):
                E(grp)
            nxt_dma += 1
    for kp in range(NG1):
        park(kp)
    st.wait_tag(lambda t: t == ('ost', 0))
    R('s_barrier')
    stamp(7)
    R(f's_cmp_lg_u32 s{sWAVE}, 0')
    R('s_cbranch_scc1 L_nosig')
    R(f's_lshl_b32 s70, s{sH}, 2')
    R(f's_add_u32 s70, s70, s{sFLAG}')
    R(f's_lshl_b32 s71, s{sB}, 2')
    R('v_mov_b32 v20, 0')
    R('v_mov_b32 v21, 1')
    R('s_mov_b64 exec, 1')
    R(f'buffer_store_dword v21, v20, s[{sWS}:{sWS+3}], s70 offen')
    R(f'buffer_atomic_add v21, v20, s[{sDBG}:{sDBG+3}], s71 offen offset:64')
    R('s_mov_b64 exec, -1')
    st.label('L_nosig')
    R(f's_cmp_ge_u32 s{sTQ}, 7')
    R('s_cbranch_scc1 L_fin')
    for kp in range(NG1, NR):
        park(kp)
    st.wait(lg=0)
    if nxt_dma < 32:
        for grp in wo_dma(nxt_dma):
            E(grp)
        nxt_dma += 1
    stamp(8)
    st.wait_tag(lambda t: t == ('reg', 0))
    R('v_readfirstlane_b32 s70, v22')
    R('v_readfirstlane_b32 s71, v23')
    R(f's_lshl_b32 s72, s{sXCC}, 3')
    R('s_lshr_b64 s[70:71], s[70:71], s72')
    R('s_and_b32 s70, s70, 0xff')
    R('v_and_b32 v20, 31, v1')
    R('v_lshlrev_b32 v20, 2, v20')
    R('v_mov_b32 v21, 0')
    R(f's_mov_b32 s73, {cfg.get("spin", 200000)}')
    R(f's_lshl_b32 s74, s{sB}, 2')
    R('s_cmp_lg_u32 s70, 32')
    R('s_cbranch_scc1 L_poll_glob')
    nv = len(st.vm)
    st.label('L_poll_loc')
    R(f'buffer_load_dword v22, v20, s[{sWS}:{sWS+3}], s{sFLAG} offen sc1')
    R('s_sub_u32 s73, s73, 1')
    R('s_waitcnt vmcnt(0)')
    R('v_cmp_ne_u32 vcc, 1, v22')
    R('s_cmp_eq_u32 s73, 0')
    R('s_cbranch_scc1 L_poll_other')
    R('s_cbranch_vccnz L_poll_loc')
    R('s_branch L_poll_other')
    st.label('L_poll_glob')
    R(f'buffer_load_dword v22, v21, s[{sDBG}:{sDBG+3}], s74 offen offset:64 sc1')
    R('s_sub_u32 s73, s73, 1')
    R('s_waitcnt vmcnt(0)')
    R('v_cmp_ne_u32 vcc, 32, v22')
    R('s_cmp_eq_u32 s73, 0')
    R('s_cbranch_scc1 L_poll_other')
    R('s_cbranch_vccz L_poll_other')
    R('s_sleep 8')
    R('s_branch L_poll_glob')
    st.label('L_poll_other')
    R(f's_cmp_lg_u32 s{sTQ}, 3')
    R('s_cbranch_scc1 L_go')
    R('s_xor_b32 s74, s74, 4')
    R(f's_mov_b32 s73, {cfg.get("spin", 200000)}')
    st.label('L_poll_g2')
    R(f'buffer_load_dword v22, v21, s[{sDBG}:{sDBG+3}], s74 offen offset:64 sc1')
    R('s_sub_u32 s73, s73, 1')
    R('s_waitcnt vmcnt(0)')
    R('v_cmp_ne_u32 vcc, 32, v22')
    R('s_cmp_eq_u32 s73, 0')
    R('s_cbranch_scc1 L_go')
    R('s_cbranch_vccz L_go')
    R('s_sleep 4')
    R('s_branch L_poll_g2')
    st.label('L_go')
    st.vm = []
    stamp(9)
    lds_k = list(range(NR, 32))
    reg_k = list(range(NR))
    order = []
    while lds_k or reg_k:
        if lds_k and (not reg_k or len(lds_k) * NR >= len(reg_k) * (32 - NR) - 1e-9):
            order.append(lds_k.pop(0))
        else:
            order.append(reg_k.pop(0))
    PD = cfg.get('opd', 3)
    def Of(pos, i): return V(128 + 16 * (pos % 4) + 4 * i, 4)
    def Acc(sb, i): return V(64 + 16 * i + 4 * sb, 4)
    vOa = [V(20), V(21), V(22), V(23), V(24), V(25), V(26), V(27)]
    for k in range(8):
        E(valu('v_add_u32', vOa[k], 4096 * k, vL16))
    def oloads(pos):
        kp = order[pos]
        return [bload('buffer_load_dwordx4', Of(pos, i), vOa[kp >> 2], sWS, f's{sR[i]}', off=1024 * (kp & 3),
                      flags=cfg.get('oload', ' sc1'), tag=('o', pos)) for i in range(4)]
    for pos in range(PD):
        E(oloads(pos))
    ldsseq = [kp for kp in order if kp >= NR]
    if ldsseq:
        E(wo_reads(ldsseq[0]))
    for pos in range(32):
        kp = order[pos]
        seq = []
        if pos + PD < 32:
            seq += [[x] for x in oloads(pos + PD)]
        if kp >= NR:
            k = ldsseq.index(kp)
            if k + 1 < len(ldsseq):
                seq += [('w', ldsseq[k + 1])] + [[x] for x in wo_reads(ldsseq[k + 1])]
            if nxt_dma < 32:
                seq += wo_dma(nxt_dma)
                nxt_dma += 1
        ms = [mfma(Acc(sb, i), Wreg(kp, sb), Of(pos, i), 0 if pos == 0 else Acc(sb, i)) for i in range(4) for sb in range(4)]
        for g, m in enumerate(ms):
            E(m)
            if g + 1 < 16:
                st.prewait(ms[g + 1])
            k = 0
            while seq and k < (2 if len(seq) > 15 - g else 1):
                it = seq.pop(0)
                if isinstance(it, tuple):
                    st.wait_tag(lambda t, kk=it[1]: t == ('wo', kk))
                    continue
                if it[-1].kind == 'dma':
                    assert g >= 4
                E(it)
                k += 1
        assert not seq
    stamp(10)
    st.force_wait(vm=0, lg=0)
    R('s_barrier')
    R(f's_lshl_b32 s70, s{sWAVE}, 14')
    E(valu('v_add_u32', V(20), 's70', vL16))
    for i in range(4):
        for sb in range(4):
            E(ds_write('ds_write_b128', V(20), Acc(sb, i), 4096 * i + 1024 * sb))
    R(f's_lshl_b32 s70, s{sWAVE}, 12')
    E(valu('v_add_u32', V(21), 's70', vL16))
    R(f's_lshl_b32 s70, s{sMT}, 2')
    R(f's_add_u32 s70, s70, s{sWAVE}')
    R('s_mul_i32 s70, s70, 18432')
    R(f's_lshl_b32 s71, s{sNT}, 7')
    R('s_add_u32 s70, s70, s71')
    R('v_and_b32 v22, 15, v1')
    R('v_mul_u32_u24 v22, 1152, v22')
    R('v_bfe_u32 v23, v1, 4, 1')
    R('v_lshl_add_u32 v22, v23, 5, v22')
    R('v_lshrrev_b32 v23, 5, v1')
    R('v_lshl_add_u32 v22, v23, 4, v22')
    st.wait(lg=0)
    R('s_barrier')
    for ww in range(4):
        for sb in range(4):
            E(ds_read('ds_read_b128', V(128 + 16 * ww + 4 * sb, 4), V(21), 16384 * ww + 1024 * sb))
    for ww in (1, 3):
        for k in range(0, 16, 2):
            r, q = V(128 + 16 * (ww - 1) + k, 2), V(128 + 16 * ww + k, 2)
            E(I(f'v_pk_add_f32 {rtxt(r)}, {rtxt(r)}, {rtxt(q)}', 'valu', rset(r, q), rset(r)))
    for k in range(0, 16, 2):
        r, q = V(128 + k, 2), V(160 + k, 2)
        E(I(f'v_pk_add_f32 {rtxt(r)}, {rtxt(r)}, {rtxt(q)}', 'valu', rset(r, q), rset(r)))
    for k in range(8):
        E(valu('v_cvt_pk_bf16_f32', V(64 + k), V(128 + 2 * k), V(129 + 2 * k)))
    for pr in range(2):
        for k in range(2):
            E(perm('v_permlane16_swap_b32', V(64 + 4 * pr + k), V(64 + 4 * pr + 2 + k)))
    for pr in range(2):
        E(bstore('buffer_store_dwordx4', V(64 + 4 * pr, 4), V(22), sOUT, 's70', off=64 * pr))
    st.label('L_fin')
    if cfg.get('stamp'):
        R('s_waitcnt vmcnt(0)')
        stamp(1)
        R('s_waitcnt lgkmcnt(0)')
        R(f's_cmp_lg_u32 s{sWAVE}, 0')
        R('s_cbranch_scc1 L_end')
        for i in range(22):
            R(f'v_mov_b32 v{40+i}, s{80+i}')
        R('v_mov_b32 v62, 0\n\tv_mov_b32 v63, 0')
        R('s_lshl_b32 s70, s2, 10')
        R('s_add_u32 s70, s70, 0x8000000')
        R('v_mov_b32 v2, 0')
        for i in range(6):
            R(f'buffer_store_dwordx4 v[{40+4*i}:{43+4*i}], v2, s[{sWS}:{sWS+3}], s70 offen offset:{16*i}')
    st.label('L_end')
    R('s_endpgm')
    return st.text()


def build(cfg):
    k = gen(cfg)
    hdr = open('standalone__mha_block_cached__near_ridge.s.ref').read().split('\n')
    out = '\n'.join(hdr[:9]) + '\n'
    out += '; @launch grid=(256,1,1) block=(256,1,1) lds=163840\n'
    out += '.amdgcn_target "amdgcn-amd-amdhsa--gfx950"\n.text\n'
    out += k
    out += '.fill 8192, 4, 0xbf800000\n'
    out += f'''.section .rodata,"a"
.p2align 6
.amdhsa_kernel {NAME}
  .amdhsa_next_free_vgpr 512
  .amdhsa_next_free_sgpr 102
  .amdhsa_accum_offset 256
  .amdhsa_group_segment_fixed_size 0
  .amdhsa_kernarg_size 64
  .amdhsa_user_sgpr_count 2
  .amdhsa_user_sgpr_kernarg_segment_ptr 1
  .amdhsa_system_sgpr_workgroup_id_x 1
.end_amdhsa_kernel
'''
    return out

if __name__ == '__main__':
    cfg = {}
    outp = 'standalone__mha_block_cached__near_ridge.s'
    for a in sys.argv[1:]:
        if a.endswith('.s'):
            outp = a
        else:
            k, v = a.split('=')
            try: v = int(v)
            except ValueError: v = v.replace('+', ' ')
            cfg[k] = v
    open(outp, 'w').write(build(cfg))
    print('wrote', outp)
```
